```python
import torch

def _softmax(x, axis=-1):
    return torch.softmax(x, dim=axis)
def _gelu(x):
    return torch.nn.functional.gelu(x, approximate="tanh")
def _silu(x):
    return torch.nn.functional.silu(x)
def _sigmoid(x):
    return torch.sigmoid(x)
def _layernorm(x, axis=-1, eps=1e-5):
    m = x.mean(dim=axis, keepdim=True)
    v = x.var(dim=axis, keepdim=True, unbiased=False)
    return (x - m) / torch.sqrt(v + eps)
def _scatter_add(tgt, idx, src, axis=0):
    return tgt.clone().index_add_(axis, idx, src)
def _segment_sum(src, seg, n):
    out = torch.zeros((n,) + src.shape[1:], dtype=src.dtype)
    return out.index_add_(0, seg, src)
def _pad(x, pw):
    flat = tuple(v for pair in reversed(pw) for v in pair)
    return torch.nn.functional.pad(x, flat)

kernel_name = 'recurrent_scan__spectral_gfnet__glu_gated_geglu__prompt'

def setup_inputs():

    _w = (lambda a: (lambda t: t.to(torch.bfloat16) if t.is_floating_point() else t)(torch.as_tensor(a)))
    def _A_setup():
        B, S, D = 1, 2048, 512
        Df = D // 2 + 1
        return {
            "x": _w((lambda *s: torch.randn(*s, dtype=torch.bfloat16) * 0.1)(B, S, D)),
            "w_r": _w((lambda *s: torch.randn(*s, dtype=torch.bfloat16) * 3.2)(S, Df) * 0.02),
            "w_i": _w((lambda *s: torch.randn(*s, dtype=torch.bfloat16) * 3.2)(S, Df) * 0.02),
        }
    _A_in = _A_setup()

    def _B_setup():
        B, S, Dm, Df = 1, 2048, 512, 1376
        return {
            "x": _w((lambda *s: torch.randn(*s, dtype=torch.bfloat16) * 0.1)(B, S, Dm)),
            "w_gate": _w((lambda *s: torch.randn(*s, dtype=torch.bfloat16) * 0.8)(Dm, Df) * (Dm ** -0.5)),
            "w_up": _w((lambda *s: torch.randn(*s, dtype=torch.bfloat16) * 0.8)(Dm, Df) * (Dm ** -0.5)),
            "w_down": _w((lambda *s: torch.randn(*s, dtype=torch.bfloat16) * 0.8)(Df, Dm) * (Df ** -0.5)),
        }
    _B_in = _B_setup()

    return {
        "A_x": _A_in["x"],
        "A_w_r": _A_in["w_r"],
        "A_w_i": _A_in["w_i"],
        "B_x": _B_in["x"],
        "B_w_gate": _B_in["w_gate"],
        "B_w_up": _B_in["w_up"],
        "B_w_down": _B_in["w_down"],
    }

def reference(A_x, A_w_r, A_w_i, B_x, B_w_gate, B_w_up, B_w_down):
    def _A_ref(x, w_r, w_i):
        B, S, D = x.shape
        X = (lambda x, axes=(-2,-1): torch.fft.rfft2(x.float(), dim=axes))(x, axes=(-2, -1))
        W = w_r + 1j * w_i
        X = X * W
        y = (lambda x, s, axes=(-2,-1): torch.fft.irfft2(x, s=s, dim=axes).to(torch.bfloat16))(X, (S, D), axes=(-2, -1))
        return y

    def _B_ref(x, w_gate, w_up, w_down):
        g = torch.einsum("bsd,df->bsf", x, w_gate)
        u = torch.einsum("bsd,df->bsf", x, w_up)
        h = _gelu(g) * u
        return torch.einsum("bsf,fd->bsd", h, w_down)

    x = A_x
    xn = _layernorm(x, axis=-1)
    s = _A_ref(xn, A_w_r, A_w_i)
    g = _silu(_B_ref(xn, B_w_gate, B_w_up, B_w_down))
    return x + s * g
```

```python
import re, struct

def f2u(f):
    return struct.unpack("<I", struct.pack("<f", f))[0]
def flit(f):
    return "0x%08x" % f2u(f)

def v(i): return "v%d" % i
def s(i): return "s%d" % i
def vr(i, n):
    assert n > 1
    return "v[%d:%d]" % (i, i + n - 1)
def sr(i, n): return "s[%d:%d]" % (i, i + n - 1)

TRANS = ("v_exp_f32", "v_log_f32", "v_rcp_f32", "v_rsq_f32", "v_sqrt_f32", "v_sin_f32", "v_cos_f32", "v_rcp_iflag_f32")

_reg_re = re.compile(r"\b([vsa])(\d+)\b|\b([vsa])\[(\d+):(\d+)\]|\b(vcc|exec|m0|scc)\b")

def regs_of(tok):
    out = set()
    for m in _reg_re.finditer(tok):
        if m.group(1):
            out.add((m.group(1), int(m.group(2))))
        elif m.group(3):
            for i in range(int(m.group(4)), int(m.group(5)) + 1):
                out.add((m.group(3), i))
        else:
            out.add((m.group(6), 0))
    return out

class Ins:
    __slots__ = ("text", "op", "kind", "dst", "src", "dpp", "ops", "lds", "nop")
    def __init__(self, text):
        self.text = text
        t = text.split(";")[0].strip()
        self.op = t.split()[0] if t else ""
        rest = t[len(self.op):].strip()
        ops = [o.strip() for o in rest.split(",")] if rest else []
        self.ops = ops
        op = self.op
        self.dpp = ("row_" in rest or "quad_perm" in rest or "wave_" in rest or "_dpp" in op)
        self.lds = False
        self.nop = 0
        self.dst = set(); self.src = set()
        if op.endswith(":") or op.startswith("."):
            self.kind = "label"; return
        if op == "s_nop":
            self.kind = "nop"; self.nop = int(ops[0], 0) + 1; return
        if op.startswith("v_mfma"):
            self.kind = "mfma"
            self.dst = regs_of(ops[0]); self.src = set().union(*[regs_of(o) for o in ops[1:]])
            self.srcC = regs_of(ops[3])
            return
        if op.startswith("v_"):
            self.kind = "trans" if op in TRANS else "valu"
            if op.startswith("v_cmp"):
                self.dst = regs_of(ops[0]); self.src = set().union(*[regs_of(o) for o in ops[1:]])
            elif op in ("v_add_co_u32", "v_sub_co_u32", "v_addc_co_u32", "v_subb_co_u32"):
                self.dst = regs_of(ops[0]) | regs_of(ops[1]); self.src = set().union(*[regs_of(o) for o in ops[2:]])
            elif op.startswith("v_permlane") and "swap" in op:
                self.dst = regs_of(ops[0]) | regs_of(ops[1]); self.src = set(self.dst)
            else:
                self.dst = regs_of(ops[0]); self.src = set().union(*[regs_of(o) for o in ops[1:]]) if len(ops) > 1 else set()
                if op.startswith("v_fmac") or op.startswith("v_pk_fmac") or op.startswith("v_dot2c"):
                    self.src |= self.dst
                if op == "v_cndmask_b32" and len(ops) == 3:
                    self.src.add(("vcc", 0))
            return
        if op.startswith("buffer_") or op.startswith("global_"):
            self.kind = "vmem"
            self.lds = bool(re.search(r"\blds\b", rest))
            if "load" in op and not self.lds:
                self.dst = regs_of(ops[0]); self.src = set().union(*[regs_of(o) for o in ops[1:]])
            else:
                self.src = set().union(*[regs_of(o) for o in ops])
                if self.lds: self.src.add(("m0", 0))
            return
        if op.startswith("ds_"):
            self.kind = "ds"
            if "read" in op or "permute" in op or "swizzle" in op:
                self.dst = regs_of(ops[0]); self.src = set().union(*[regs_of(o) for o in ops[1:]])
            else:
                self.src = set().union(*[regs_of(o) for o in ops])
            return
        if op.startswith("s_load") or op.startswith("s_buffer_load"):
            self.kind = "smem"; self.dst = regs_of(ops[0]); self.src = regs_of(ops[1]); return
        if op.startswith("s_"):
            self.kind = "salu"
            if op.startswith("s_cmp") or op.startswith("s_cbranch") or op in ("s_branch", "s_waitcnt", "s_barrier", "s_endpgm", "s_setprio", "s_sleep"):
                self.src = set().union(*[regs_of(o) for o in ops]) if ops else set()
            else:
                self.dst = regs_of(ops[0]); self.src = set().union(*[regs_of(o) for o in ops[1:]]) if len(ops) > 1 else set()
                if "saveexec" in op: self.dst.add(("exec", 0))
            return
        raise ValueError("unknown instr " + text)

class Ins2(Ins):
    __slots__ = ("srcC",)

def mfma_passes(op):
    if "16x16x32" in op or "16x16x16" in op: return 4
    if "32x32x16" in op or "32x32x8" in op: return 8
    raise ValueError(op)

def need(p, c):
    n = 0
    pv = {r for r in p.dst if r[0] in ("v", "a")}
    ps = {r for r in p.dst if r[0] not in ("v", "a")}
    isvalu_p = p.kind in ("valu", "trans")
    if isvalu_p:
        if c.kind in ("valu", "trans"):
            if c.dpp and (pv & c.src): n = max(n, 2)
            if p.kind == "trans" and c.kind != "trans" and (pv & (c.src | c.dst)): n = max(n, 1)
            if c.op in ("v_readfirstlane_b32", "v_readlane_b32") and (pv & c.src): n = max(n, 1)
            if c.op.startswith("v_permlane") and (pv & c.src): n = max(n, 2)
            if ps & c.src:
                n = max(n, 4 if c.op in ("v_readlane_b32", "v_writelane_b32") else 2)
            if ("exec", 0) in ps: n = max(n, 5)
        if c.kind == "mfma":
            if pv & c.src: n = max(n, 2)
            if ("exec", 0) in ps: n = max(n, 4)
        if c.kind == "vmem" and (ps & c.src): n = max(n, 5)
        if c.kind == "ds" and p.kind == "trans" and (pv & c.src): n = max(n, 1)
        if c.kind == "vmem" and p.kind == "trans" and (pv & c.src): n = max(n, 1)
    if p.op.startswith("v_dot"):
        if pv & (c.src | c.dst):
            same_c = False
            if c.op == p.op:
                if p.op.startswith("v_dot2c"):
                    ab = regs_of(c.ops[1]) | regs_of(c.ops[2])
                else:
                    ab = regs_of(c.ops[1]) | regs_of(c.ops[2])
                same_c = not (pv & ab)
            if not same_c: n = max(n, 3)
    if p.kind == "mfma":
        ps_ = mfma_passes(p.op)
        tab = {4: (8, 6, 3), 8: (12, 10, 7)}[ps_]
        if c.kind in ("valu", "trans"):
            if pv & (c.src | c.dst): n = max(n, tab[0])
            if p.srcC & c.dst: n = max(n, tab[2])
        if c.kind in ("vmem", "ds"):
            if pv & (c.src | c.dst): n = max(n, tab[0])
        if c.kind == "mfma":
            ab = c.src - c.srcC if not (c.srcC & (regs_of(c.ops[1]) | regs_of(c.ops[2]))) else c.src
            ab = regs_of(c.ops[1]) | regs_of(c.ops[2])
            if pv & ab: n = max(n, tab[0])
            if pv & c.srcC:
                if not (c.srcC == pv and mfma_passes(c.op) == ps_): n = max(n, tab[1])
    if p.kind == "salu" and ("m0", 0) in p.dst and c.kind == "vmem" and c.lds: n = max(n, 1)
    if p.kind == "vmem" and "store" in p.op and ("x3" in p.op or "x4" in p.op):
        data = regs_of(p.ops[0]) if p.op.startswith("buffer_") else regs_of(p.ops[1])
        if data & c.dst: n = max(n, 2 if c.kind in ("valu", "trans", "mfma") else 1)
    return n

def hazard_fix(lines):
    out = []
    hist = []
    pos = 0
    nins = 0
    for ln in lines:
        t = ln.split(";")[0].strip()
        if not t:
            out.append(ln); continue
        i = Ins2(ln)
        if i.kind == "label":
            out.append(ln)
            continue
        if i.kind == "nop":
            out.append(ln); pos += i.nop; continue
        req = 0
        for (p, ppos) in hist:
            n = need(p, i)
            if n:
                gap = pos - ppos - 1
                if gap < n: req = max(req, n - gap)
        while req > 0:
            k = min(req, 16)
            out.append("    s_nop %d" % (k - 1)); pos += k; req -= k; nins += 1
        out.append(ln)
        hist.append((i, pos)); pos += 1
        if len(hist) > 24: hist.pop(0)
    return out, nins

class Asm:
    def __init__(self):
        self.lines = []
    def raw(self, t): self.lines.append(t)
    def label(self, l): self.lines.append(l + ":")
    def c(self, t): self.lines.append("    ; " + t)
    def __getattr__(self, op):
        if op.startswith("__"): raise AttributeError(op)
        def f(*args, mod=""):
            self.lines.append("    " + op + " " + ", ".join(str(a) for a in args) + ((" " + mod) if mod else ""))
        return f
```

```python
from dsl import *
import math

SQH = math.sqrt(0.5)

class Cx:
    def __init__(self, base, swap=False):
        self.base = base; self.swap = swap
    @property
    def re(self): return v(self.base + (1 if self.swap else 0))
    @property
    def im(self): return v(self.base + (0 if self.swap else 1))
    @property
    def pair(self): return vr(self.base, 2)

def bf(a, x, y, t):
    a.v_sub_f32(t.re, x.re, y.re); a.v_sub_f32(t.im, x.im, y.im)
    a.v_add_f32(x.re, x.re, y.re); a.v_add_f32(x.im, x.im, y.im)
    return x, t, y
def bf_mi(a, x, y, t):
    a.v_sub_f32(t.re, x.re, y.im); a.v_add_f32(t.im, x.im, y.re)
    a.v_add_f32(x.re, x.re, y.im); a.v_sub_f32(x.im, x.im, y.re)
    return x, t, y
def bf_h(a, x, y, t, sh):
    a.v_fma_f32(t.re, "-" + y.re, sh, x.re); a.v_fma_f32(t.im, "-" + y.im, sh, x.im)
    a.v_fma_f32(x.re, y.re, sh, x.re); a.v_fma_f32(x.im, y.im, sh, x.im)
    return x, t, y
def bf_mi_h(a, x, y, t, sh):
    a.v_fma_f32(t.re, "-" + y.im, sh, x.re); a.v_fma_f32(t.im, y.re, sh, x.im)
    a.v_fma_f32(x.re, y.im, sh, x.re); a.v_fma_f32(x.im, "-" + y.re, sh, x.im)
    return x, t, y

def dft8(a, X, T, sh):
    T = list(T)
    x = list(X)
    r = []
    A = [None] * 8
    for j in range(4):
        t = T.pop()
        A[j], A[j + 4], fr = bf(a, x[j], x[j + 4], t); T.append(fr)
    t = T.pop()
    a.v_add_f32(t.re, A[5].re, A[5].im); a.v_sub_f32(t.im, A[5].im, A[5].re)
    T.append(A[5]); p5 = t
    t = T.pop()
    a.v_sub_f32(t.re, A[7].im, A[7].re); a.v_add_f32(t.im, A[7].re, A[7].im)
    T.append(A[7]); q7 = t
    out = [None] * 8
    t = T.pop(); c0, c1, fr = bf(a, A[0], A[2], t); T.append(fr)
    t = T.pop(); c2, d, fr = bf(a, A[1], A[3], t); T.append(fr)
    t = T.pop(); out[0], out[4], fr = bf(a, c0, c2, t); T.append(fr)
    t = T.pop(); out[2], out[6], fr = bf_mi(a, c1, d, t); T.append(fr)
    t = T.pop(); c0, c1, fr = bf_mi(a, A[4], A[6], t); T.append(fr)
    t = T.pop()
    a.v_sub_f32(t.re, p5.re, q7.re); a.v_add_f32(t.im, p5.im, q7.im)
    a.v_add_f32(p5.re, p5.re, q7.re); a.v_sub_f32(p5.im, p5.im, q7.im)
    c2u, du = p5, t; T.append(q7)
    t = T.pop(); out[1], out[5], fr = bf_h(a, c0, c2u, t, sh); T.append(fr)
    t = T.pop(); out[3], out[7], fr = bf_mi_h(a, c1, du, t, sh); T.append(fr)
    return out, T

def cmul(a, x, c, d, t1, t2):
    a.v_mul_f32(t1, x.im, d); a.v_mul_f32(t2, x.im, c)
    a.v_fma_f32(x.im, x.re, d, t2); a.v_fma_f32(x.re, x.re, c, "-" + t1)

def cmul_conj(a, x, c, d, t1, t2):
    a.v_mul_f32(t1, x.im, d); a.v_mul_f32(t2, x.im, c)
    a.v_fma_f32(x.im, "-" + x.re, d, t2); a.v_fma_f32(x.re, x.re, c, t1)

def twiddle_setup(a, lane, tw1, tw2, t0, t1, t2):
    a.v_lshrrev_b32(t0, 3, lane)
    a.v_cvt_f32_u32(t1, t0)
    for k0 in range(1, 8):
        a.v_mul_f32(t2, flit(-k0 / 64.0), t1)
        a.v_cos_f32(v(tw1 + 2 * (k0 - 1)), t2)
        a.v_sin_f32(v(tw1 + 2 * (k0 - 1) + 1), t2)
    a.v_and_b32(t0, 7, lane)
    a.v_cvt_f32_u32(t0, t0)
    a.v_mul_f32(t1, flit(-1.0 / 512.0), t1)
    for k1 in range(8):
        a.v_add_f32(t2, flit(8.0 * k1), t0) if k1 else a.v_mov_b32(t2, t0)
        a.v_mul_f32(t2, t2, t1)
        a.v_cos_f32(v(tw2 + 2 * k1), t2)
        a.v_sin_f32(v(tw2 + 2 * k1 + 1), t2)

def exch_addr_setup(a, lane, w1, r1, w2, r2, t0, t1, base_sgpr=None, base_imm=0):
    a.v_and_b32(t0, 7, lane); a.v_lshrrev_b32(t1, 3, lane)
    a.v_mul_u32_u24(w1, 72, t0); a.v_mul_u32_u24(r1, 576, t1); a.v_add_u32(w1, w1, r1)
    a.v_lshlrev_b32(w2, 3, t0); a.v_add_u32(w2, w2, r1)
    a.v_mul_u32_u24(r1, 72, t1); a.v_lshlrev_b32(t0, 3, t0); a.v_add_u32(r1, r1, t0)
    a.v_lshlrev_b32(r2, 3, lane)
    if base_sgpr is not None:
        for r in (w1, r1, w2, r2): a.v_add_u32(r, base_sgpr, r)

def fft512(a, X, T, tw1, tw2, w1, r1, w2, r2, sh, t1, t2, lbase=0):
    out, T = dft8(a, X, T, sh)
    for k0 in range(1, 8):
        cmul(a, out[k0], v(tw1 + 2 * (k0 - 1)), v(tw1 + 2 * (k0 - 1) + 1), t1, t2)
    for k0 in range(8):
        a.ds_write_b64(w1, out[k0].pair, mod="offset:%d" % (lbase + 8 * k0))
    for n1 in range(8):
        a.ds_read_b64(out[n1].pair, r1, mod="offset:%d" % (lbase + 576 * n1))
    a.s_waitcnt("lgkmcnt(0)")
    out, T = dft8(a, out, T, sh)
    for k1 in range(8):
        cmul(a, out[k1], v(tw2 + 2 * k1), v(tw2 + 2 * k1 + 1), t1, t2)
    for k1 in range(8):
        a.ds_write_b64(w2, out[k1].pair, mod="offset:%d" % (lbase + 64 * k1))
    for n0 in range(8):
        a.ds_read_b64(out[n0].pair, r2, mod="offset:%d" % (lbase + 576 * n0))
    a.s_waitcnt("lgkmcnt(0)")
    out, T = dft8(a, out, T, sh)
    return out, T
```

```python
from dsl import *
from fftcore import *
import math

WS_C = 0
WS_ZT = 0x700000
WS_H = 0xC00000
WS_G = 0x1200000
WS_BYTES = 0x1400000

class VM:
    def __init__(self, a, ops=None):
        self.a = a; self.ops = list(ops) if ops else []
    def issue(self, tag): self.ops.append(tag)
    def wait(self, tag):
        idx = max(i for i, t in enumerate(self.ops) if t == tag)
        n = len(self.ops) - 1 - idx
        assert n < 64
        self.a.s_waitcnt("vmcnt(%d)" % n)

def srd(a, dst, lo, nbytes):
    a.s_mov_b32(s(dst), s(lo)); a.s_mov_b32(s(dst + 1), s(lo + 1))
    a.s_mov_b32(s(dst + 2), "0x%x" % nbytes); a.s_mov_b32(s(dst + 3), "0x00020000")

A_OFF = 0
RING = 65536
SLOT = 24576
GATH = RING + 3 * SLOT
K1_LDS = GATH + 24576

S_X, S_WG, S_WU, S_WS, S_WR, S_WI = 4, 8, 12, 16, 20, 24
S_WAVE, S_NG, S_MB, S_W4 = 28, 29, 30, 31
S_XO0, S_XO1 = 46, 47
S_ONES, S_ONELO, S_ONEHI, S_SQH = 48, 49, 50, 51

V_LANE = 1
XD = 8

def ln(a, vm):
    ST = 40
    for i in range(8): a.v_mov_b32(v(ST + i), 0)
    for p in range(2):
        vm.wait("x%d" % p)
        for i in range(16):
            x = v(XD + p * 16 + i)
            a.v_dot2c_f32_bf16(v(ST + p * 4 + (i & 1)), s(S_ONES), x)
            a.v_dot2c_f32_bf16(v(ST + p * 4 + 2 + (i & 1)), x, x)
    for p in range(2):
        a.v_add_f32(v(ST + p * 4), v(ST + p * 4), v(ST + p * 4 + 1))
        a.v_add_f32(v(ST + p * 4 + 2), v(ST + p * 4 + 2), v(ST + p * 4 + 3))
    for r in (8, 4, 2, 1):
        for p in range(2):
            for q in (0, 2):
                x = v(ST + p * 4 + q)
                a.v_add_f32_dpp(x, x, x, mod="row_ror:%d row_mask:0xf bank_mask:0xf" % r)
    for p in range(2):
        a.v_mul_f32(v(ST + p * 4), flit(1 / 512.), v(ST + p * 4))
        a.v_mul_f32(v(ST + p * 4 + 2), flit(1 / 512.), v(ST + p * 4 + 2))
    for p in range(2):
        a.v_fma_f32(v(ST + p * 4 + 2), "-" + v(ST + p * 4), v(ST + p * 4), v(ST + p * 4 + 2))
        a.v_cvt_pk_bf16_f32(v(48 + p), 0, "-" + v(ST + p * 4))
    for p in range(2):
        a.v_cvt_pk_bf16_f32(v(ST + p * 4 + 2), 0, v(ST + p * 4 + 2))
    for p in range(2):
        a.v_add_f32(v(ST + p * 4 + 2), flit(1e-5), v(ST + p * 4 + 2))
    for p in range(2):
        a.v_cvt_pk_bf16_f32(v(ST + p * 4 + 2), 0, v(ST + p * 4 + 2))
    for p in range(2):
        a.v_sqrt_f32(v(ST + p * 4 + 2), v(ST + p * 4 + 2))
    for p in range(2):
        a.v_cvt_pk_bf16_f32(v(ST + p * 4 + 2), 0, v(ST + p * 4 + 2))
    for p in range(2):
        a.v_rcp_f32(v(50 + 2 * p), v(ST + p * 4 + 2))
    T = 56
    for p in range(2):
        for j in range(4):
            xb = XD + p * 16 + j * 4
            for d in range(4):
                a.v_dot2_f32_bf16(v(T + 2 * d), v(xb + d), s(S_ONELO), v(48 + p))
                a.v_dot2_f32_bf16(v(T + 2 * d + 1), v(xb + d), s(S_ONEHI), v(48 + p))
            for d in range(8):
                a.v_cvt_pk_bf16_f32(v(T + d), 0, v(T + d))
            for d in range(4):
                a.v_pk_mul_f32(vr(T + 2 * d, 2), vr(T + 2 * d, 2), vr(50 + 2 * p, 2), mod="op_sel_hi:[1,0]")
            for d in range(4):
                a.v_cvt_pk_bf16_f32(v(xb + d), v(T + 2 * d), v(T + 2 * d + 1))
            a.ds_write_b128(v(4 + p), vr(xb, 4), mod="offset:%d" % (j * 256))

def k1(a, NF1=10):
    a.label("k1_kernel")
    a.s_cmp_ge_u32(s(2), 256)
    a.s_cbranch_scc1("K1_END")
    a.s_load_dwordx4(sr(32, 4), sr(0, 2), 0)
    a.s_load_dwordx2(sr(36, 2), sr(0, 2), 16)
    a.s_load_dwordx4(sr(40, 4), sr(0, 2), 32)
    a.s_load_dwordx2(sr(44, 2), sr(0, 2), 72)
    a.v_and_b32(v(V_LANE), 63, v(0))
    a.v_lshrrev_b32(v(2), 6, v(0))
    a.v_readfirstlane_b32(s(S_WAVE), v(2))
    a.s_and_b32(s(S_NG), s(2), 7)
    a.s_lshr_b32(s(S_MB), s(2), 3)
    a.s_and_b32(s(S_W4), s(S_WAVE), 3)
    a.s_lshl_b32(s(S_XO0), s(S_MB), 16)
    a.s_lshl_b32(s(52), s(S_WAVE), 13)
    a.s_add_u32(s(S_XO0), s(S_XO0), s(52))
    a.s_add_u32(s(S_XO1), s(S_XO0), 4096)
    a.s_mov_b32(s(S_ONES), "0x3f803f80"); a.s_mov_b32(s(S_ONELO), "0x00003f80"); a.s_mov_b32(s(S_ONEHI), "0x3f800000")
    a.s_mov_b32(s(S_SQH), flit(SQH))
    a.v_lshrrev_b32(v(2), 4, v(V_LANE))
    a.v_and_b32(v(6), 15, v(V_LANE))
    a.v_lshlrev_b32(v(3), 10, v(2))
    a.v_lshl_or_b32(v(3), v(6), 4, v(3))
    a.s_lshl_b32(s(52), s(S_WAVE), 3)
    for p in range(2):
        a.v_add_u32(v(7), s(52), v(2))
        if p: a.v_add_u32(v(7), 4, v(7))
        a.v_and_b32(v(40), 15, v(7))
        a.v_xor_b32(v(40), v(40), v(6))
        a.v_lshlrev_b32(v(7), 10, v(7))
        a.v_lshl_or_b32(v(4 + p), v(40), 4, v(7))
    a.s_waitcnt("lgkmcnt(0)")
    srd(a, S_X, 32, 2048 * 1024)
    vm0 = VM(a)
    for p in range(2):
        for j in range(4):
            a.buffer_load_dwordx4(vr(XD + p * 16 + j * 4, 4), v(3), sr(S_X, 4), s(S_XO0 + p), mod="offen offset:%d" % (j * 256))
            vm0.issue("x%d" % p)
    srd(a, S_WG, 40, 512 * 2752); srd(a, S_WU, 42, 512 * 2752); srd(a, S_WS, 44, WS_BYTES)
    srd(a, S_WR, 34, 2048 * 514); srd(a, S_WI, 36, 2048 * 514)
    S_N0 = 53
    a.s_mul_i32(s(S_N0), s(S_NG), 192)
    a.s_mul_i32(s(52), s(S_W4), 48)
    a.s_add_u32(s(S_N0), s(S_N0), s(52))
    a.s_cmp_ge_u32(s(S_WAVE), 4)
    a.s_cbranch_scc1("K1_LOADER")

    vm = VM(a, vm0.ops)
    VA = 112
    VB = 116
    VH = 117
    for q4 in range(4):
        a.v_add_u32(v(40), 4 * q4, v(2))
        a.v_xor_b32(v(40), v(40), v(6))
        a.v_lshlrev_b32(v(41), 10, v(6))
        a.v_lshl_or_b32(v(VA + q4), v(40), 4, v(41))
    a.s_mul_i32(s(52), s(S_W4), 6144)
    a.s_add_u32(s(52), s(52), RING)
    a.v_lshrrev_b32(v(40), 2, v(V_LANE))
    a.v_mul_u32_u24(v(40), 96, v(40))
    a.v_and_b32(v(41), 3, v(V_LANE))
    a.v_lshl_add_u32(v(40), v(41), 3, v(40))
    a.v_add_u32(v(VB), s(52), v(40))
    a.v_lshlrev_b32(v(40), 6, v(6))
    a.v_lshl_or_b32(v(VH), v(2), 3, v(40))
    ln(a, vm)
    a.s_waitcnt("lgkmcnt(0)")
    XF = [64, 88 + 0]
    XF = [8, 48]
    WF = [24, 64]
    ACC = 128
    def acc(f, mt): return vr(ACC + (f * 4 + mt) * 4, 4)
    def reads(i):
        st = i & 1; slot = i % 3
        out = []
        def rx(mt):
            out.append(("ds_read_b128", vr(XF[st] + mt * 4, 4), v(VA + (i & 3)), "offset:%d" % (mt * 16384 + (i >> 2) * 256)))
        def rw(f):
            mat, tile = divmod(f, 3)
            for h in range(2):
                out.append(("ds_read_b64_tr_b16", vr(WF[st] + f * 4 + h * 2, 2), v(VB), "offset:%d" % (slot * SLOT + mat * 3072 + h * 1536 + tile * 32)))
        rx(0); rw(0); rx(1); rx(2); rx(3)
        for f in range(1, 6): rw(f)
        return out
    def emit_read(r):
        getattr(a, r[0])(r[1], r[2], mod=r[3])
    def mfma(i, f, mt):
        st = i & 1
        a.v_mfma_f32_16x16x32_bf16(acc(f, mt), vr(WF[st] + f * 4, 4), vr(XF[st] + mt * 4, 4), acc(f, mt) if i > 0 else 0)
    a.s_setprio(2)
    a.s_barrier()
    for r in reads(0): emit_read(r)
    for i in range(1, 17):
        a.s_waitcnt("lgkmcnt(10)")
        for mt in range(4): mfma(i - 1, 0, mt)
        a.s_waitcnt("lgkmcnt(0)")
        rs = []
        if i < 16:
            a.s_barrier()
            rs = reads(i)
        for f in range(1, 6):
            for mt in range(4):
                mfma(i - 1, f, mt)
                if rs: emit_read(rs.pop(0))
        assert not rs
    a.s_setprio(0)
    c0 = -2.0 * math.sqrt(2.0 / math.pi) * math.log2(math.e)
    c1 = c0 * 0.044715
    S_C1, S_ONE2 = 54, 56
    a.s_mov_b32(s(S_C1), flit(c1)); a.s_mov_b32(s(S_C1 + 1), flit(c1))
    a.s_mov_b32(s(S_ONE2), flit(1.0)); a.s_mov_b32(s(S_ONE2 + 1), flit(1.0))
    VC0 = 8
    a.v_mov_b32(v(VC0), flit(c0)); a.v_mov_b32(v(VC0 + 1), flit(c0))
    S_HB = 58
    a.s_mul_i32(s(S_HB), s(S_MB), 44 * 4096)
    a.s_add_u32(s(S_HB), s(S_HB), WS_H)
    for j in range(3):
        a.s_add_u32(s(52), s(S_N0), 16 * j)
        a.s_lshr_b32(s(59), s(52), 4)
        a.s_cmp_ge_u32(s(59), 88)
        a.s_cbranch_scc1("K1_END")
        a.s_cmp_lt_u32(s(59), 86)
        a.s_cselect_b32(s(60), -1, 0)
        a.s_lshr_b32(s(61), s(52), 5)
        a.s_lshl_b32(s(61), s(61), 12)
        a.s_and_b32(s(62), s(52), 16)
        a.s_lshl_b32(s(62), s(62), 1)
        a.s_add_u32(s(61), s(61), s(62))
        a.s_add_u32(s(61), s(61), s(S_HB))
        for mt in range(4):
            G = ACC + (j * 4 + mt) * 4; U = ACC + ((3 + j) * 4 + mt) * 4
            T = 16 + (mt & 1) * 8
            for d in range(4): a.v_cvt_pk_bf16_f32(v(G + d), 0, v(G + d))
            for d in range(4): a.v_cvt_pk_bf16_f32(v(U + d), 0, v(U + d))
            for d in (0, 2): a.v_pk_mul_f32(vr(T + d, 2), vr(G + d, 2), vr(G + d, 2))
            for d in (0, 2): a.v_pk_fma_f32(vr(T + d, 2), vr(T + d, 2), sr(S_C1, 2), vr(VC0, 2))
            for d in (0, 2): a.v_pk_mul_f32(vr(T + d, 2), vr(T + d, 2), vr(G + d, 2))
            for d in range(4): a.v_exp_f32(v(T + d), v(T + d))
            for d in (0, 2): a.v_pk_add_f32(vr(T + d, 2), vr(T + d, 2), sr(S_ONE2, 2))
            for d in range(4): a.v_rcp_f32(v(T + d), v(T + d))
            for d in (0, 2): a.v_pk_mul_f32(vr(T + d, 2), vr(T + d, 2), vr(G + d, 2))
            for d in range(4): a.v_cvt_pk_bf16_f32(v(T + d), 0, v(T + d))
            for d in (0, 2): a.v_pk_mul_f32(vr(T + d, 2), vr(T + d, 2), vr(U + d, 2))
            a.v_cvt_pk_bf16_f32(v(G), v(T), v(T + 1)); a.v_cvt_pk_bf16_f32(v(G + 1), v(T + 2), v(T + 3))
            a.v_and_b32(v(G), s(60), v(G)); a.v_and_b32(v(G + 1), s(60), v(G + 1))
            a.buffer_store_dwordx2(vr(G, 2), v(VH), sr(S_WS, 4), s(61), mod="offen offset:%d" % (mt * 1024))
    a.s_branch("K1_END")

    a.label("K1_LOADER")
    a.s_nop(7)
    vm = VM(a, vm0.ops)
    VD = 64
    a.s_lshl_b32(s(52), s(S_N0), 1)
    for i in range(3):
        a.v_add_u32(v(40), 64 * i, v(V_LANE))
        a.v_mul_u32_u24(v(41), "0x2aab", v(40))
        a.v_lshrrev_b32(v(41), 16, v(41))
        a.v_mul_u32_u24(v(42), 6, v(41))
        a.v_sub_u32(v(42), v(40), v(42))
        a.v_lshrrev_b32(v(43), 4, v(41))
        a.v_bfe_u32(v(44), v(41), 2, 2)
        a.v_and_b32(v(45), 3, v(41))
        a.v_lshl_add_u32(v(45), v(44), 3, v(45))
        a.v_lshl_add_u32(v(45), v(43), 2, v(45))
        a.v_mul_u32_u24(v(45), 2752, v(45))
        a.v_lshl_add_u32(v(45), v(42), 4, v(45))
        a.v_add_u32(v(VD + i), s(52), v(45))
    S_RB = 54
    a.s_mul_i32(s(S_RB), s(S_W4), 6144)
    a.s_add_u32(s(S_RB), s(S_RB), RING)
    def dma(stage):
        slot = stage % 3
        for mat in range(2):
            for i in range(3):
                a.s_add_u32("m0", s(S_RB), slot * SLOT + mat * 3072 + i * 1024)
                a.buffer_load_dwordx4(v(VD + i), sr(S_WG if mat == 0 else S_WU, 4), 0, mod="offen lds")
                vm.issue("st%d" % stage)
        for i in range(3):
            a.v_add_u32(v(VD + i), 32 * 2752, v(VD + i))
    for st in range(3): dma(st)
    S_RA = 55
    S_SB = 56
    a.s_lshl_b32(s(S_RA), s(S_NG), 3)
    a.s_lshl_b32(s(52), s(S_W4), 1)
    a.s_add_u32(s(S_RA), s(S_RA), s(52))
    a.s_lshl_b32(s(52), s(S_MB), 6)
    a.s_add_u32(s(52), s(52), s(S_RA))
    a.s_mul_i32(s(52), s(52), 514)
    a.v_lshlrev_b32(v(40), 1, v(V_LANE))
    a.v_add_u32(v(40), s(52), v(40))
    a.v_mov_b32(v(41), s(52))
    WL = 200
    for row in range(2):
        for arr in range(2):
            for j in range(5):
                if j < 4:
                    a.buffer_load_ushort(v(WL + row * 10 + arr * 5 + j), v(40), sr(S_WR if arr == 0 else S_WI, 4), 0, mod="offen offset:%d" % (row * 514 + j * 128))
                else:
                    a.buffer_load_ushort(v(WL + row * 10 + arr * 5 + j), v(41), sr(S_WR if arr == 0 else S_WI, 4), 0, mod="offen offset:%d" % (row * 514 + 512))
                vm.issue("w")
    a.s_lshl_b32(s(S_SB), s(S_MB), 3)
    a.s_add_u32(s(S_SB), s(S_SB), s(S_NG))
    a.s_mul_i32(s(S_SB), s(S_SB), 96)
    TW1, TW2 = 70, 84
    twiddle_setup(a, v(V_LANE), TW1, TW2, v(40), v(41), v(42))
    S_SCR = 57
    a.s_mul_i32(s(S_SCR), s(S_W4), 4608)
    a.s_add_u32(s(S_SCR), s(S_SCR), GATH)
    W1, R1, W2, R2 = v(100), v(101), v(102), v(103)
    exch_addr_setup(a, v(V_LANE), W1, R1, W2, R2, v(40), v(41), base_sgpr=s(S_SCR))
    VXR = 104
    a.v_lshrrev_b32(v(40), 3, v(V_LANE))
    a.v_and_b32(v(41), 7, v(V_LANE))
    a.v_lshlrev_b32(v(41), 1, v(41))
    for row in range(2):
        a.s_add_u32(s(52), s(S_RA), row)
        a.s_and_b32(s(58), s(52), 15)
        a.s_lshl_b32(s(52), s(52), 10)
        for par in range(2):
            a.v_add_u32(v(42), 8 * par, v(40))
            a.v_xor_b32(v(42), s(58), v(42))
            a.v_lshl_add_u32(v(42), v(42), 4, v(41))
            a.v_add_u32(v(VXR + row * 2 + par), s(52), v(42))
    VMR = 108
    a.v_sub_u32(v(VMR), 320, v(V_LANE))
    a.v_lshlrev_b32(v(VMR), 3, v(VMR))
    a.v_add_u32(v(VMR), s(S_SCR), v(VMR))
    VGX, VGW = 109, 110
    a.s_lshl_b32(s(52), s(S_W4), 4)
    a.s_add_u32(s(52), s(52), GATH)
    a.v_mul_u32_u24(v(40), 96, v(V_LANE))
    a.v_add_u32(v(VGX), s(52), v(40))
    a.s_lshl_b32(s(52), s(S_W4), 3)
    a.s_add_u32(s(52), s(52), GATH + 64)
    a.v_add_u32(v(VGW), s(52), v(40))
    VGR = 111
    VGO = 112
    a.s_mul_i32(s(52), s(S_W4), 6144)
    a.s_add_u32(s(52), s(52), GATH)
    a.v_lshlrev_b32(v(VGR), 4, v(V_LANE))
    a.v_add_u32(v(VGR), s(52), v(VGR))
    a.s_mul_i32(s(52), s(S_W4), 64 * 24576)
    a.s_add_u32(s(52), s(52), s(S_SB))
    a.s_add_u32(s(52), s(52), WS_C)
    for i in range(6):
        a.v_add_u32(v(40), 64 * i, v(V_LANE))
        a.v_mul_u32_u24(v(41), "0x2aab", v(40))
        a.v_lshrrev_b32(v(41), 16, v(41))
        a.v_mul_u32_u24(v(42), 6, v(41))
        a.v_sub_u32(v(42), v(40), v(42))
        a.v_mul_u32_u24(v(41), 24576, v(41))
        a.v_lshl_add_u32(v(41), v(42), 4, v(41))
        a.v_add_u32(v(VGO + i), s(52), v(41))
    ln(a, vm)
    a.s_waitcnt("lgkmcnt(0)")

    f = Asm()
    DX = 120
    X = [Cx(DX + 2 * j) for j in range(8)]
    T = [Cx(136), Cx(138), Cx(140)]
    for j in range(8):
        for row in range(2):
            f.ds_read_u16(v(DX + 2 * j + row), v(VXR + row * 2 + (j & 1)), mod="offset:%d" % ((j >> 1) * 256))
    f.s_waitcnt("lgkmcnt(0)")
    for j in range(16): f.v_lshlrev_b32(v(DX + j), 16, v(DX + j))
    out, T = fft512(f, X, T, TW1, TW2, W1, R1, W2, R2, s(S_SQH), v(142), v(143))
    for j in range(4, 8): f.ds_write_b64(R2, out[j].pair, mod="offset:%d" % (512 * j))
    f.ds_write_b64(R2, out[0].pair, mod="offset:4096")
    MR = 144
    for j in range(4): f.ds_read_b64(vr(MR + 2 * j, 2), v(VMR), mod="offset:%d" % ((3 - j) * 512))
    f.s_waitcnt("lgkmcnt(0)")
    Q = 152
    for j in range(4):
        z = out[j]; mr, mi = v(MR + 2 * j), v(MR + 2 * j + 1)
        f.v_add_f32(v(Q + 4 * j), z.re, mr); f.v_sub_f32(v(Q + 4 * j + 1), z.im, mi)
        f.v_add_f32(v(Q + 4 * j + 2), z.im, mi); f.v_sub_f32(v(Q + 4 * j + 3), mr, z.re)
    z = out[4]
    f.v_add_f32(v(Q + 16), z.re, z.re); f.v_mov_b32(v(Q + 17), 0); f.v_add_f32(v(Q + 18), z.im, z.im); f.v_mov_b32(v(Q + 19), 0)
    WP = 172
    fw = Asm()
    for j in range(5):
        for row in range(2):
            fw.v_lshl_or_b32(v(WP + 2 * j + row), v(WL + row * 10 + 5 + j), 16, v(WL + row * 10 + j))
    L = f.lines
    per = (len(L) + NF1 - 1) // NF1
    segs = [L[i * per:(i + 1) * per] for i in range(NF1)]
    assert NF1 >= 4 and NF1 + 2 <= 15
    for i in range(16):
        vm.wait("st%d" % i)
        a.s_barrier()
        if 1 <= i <= 13: dma(i + 2)
        if i < NF1:
            a.lines += segs[i]
            if i == NF1 - 1: a.lines += fw.lines
        elif i == NF1:
            for j in range(4):
                a.ds_write_b128(v(VGX), vr(Q + 4 * j, 4), mod="offset:%d" % (j * 64 * 96))
                a.ds_write_b64(v(VGW), vr(WP + 2 * j, 2), mod="offset:%d" % (j * 64 * 96))
            a.s_lshl_b32(s(52), s(S_W4), 4)
            a.s_add_u32(s(52), s(52), s(S_SB))
            a.s_add_u32(s(52), s(52), WS_C + 256 * 24576)
            a.s_lshl_b32(s(58), s(S_W4), 3)
            a.s_add_u32(s(58), s(58), s(S_SB))
            a.s_add_u32(s(58), s(58), WS_C + 256 * 24576 + 64)
            a.v_mov_b32(v(40), s(52)); a.v_mov_b32(v(41), s(58))
            a.s_mov_b64("exec", 1)
            a.buffer_store_dwordx4(vr(Q + 16, 4), v(40), sr(S_WS, 4), 0, mod="offen"); vm.issue("s")
            a.buffer_store_dwordx2(vr(WP + 8, 2), v(41), sr(S_WS, 4), 0, mod="offen"); vm.issue("s")
            a.s_mov_b64("exec", -1)
            a.s_waitcnt("lgkmcnt(0)")
        elif i == NF1 + 1:
            for k in range(6):
                a.ds_read_b128(vr(120 + 4 * k, 4), v(VGR), mod="offset:%d" % (k * 1024))
            for k in range(6):
                a.s_waitcnt("lgkmcnt(%d)" % (5 - k))
                a.buffer_store_dwordx4(vr(120 + 4 * k, 4), v(VGO + k), sr(S_WS, 4), 0, mod="offen"); vm.issue("s")
    a.label("K1_END")
    a.s_endpgm()
```

```python
from dsl import *
from fftcore import *
from k1 import VM, srd, WS_C, WS_ZT, WS_H, WS_G, WS_BYTES
import math

K2_LDS = 65536
K2_VGPR = 168

S_WS, S_WD = 4, 8
S_WAVE = 12
S_SQH = 13
V_LANE = 1

class Qd:
    def __init__(self, base): self.base = base; self.c = [Cx(base), Cx(base + 2)]
    @property
    def quad(self): return vr(self.base, 4)

def qbf(a, fn, x, y, t):
    for i in range(2): fn(a, x.c[i], y.c[i], t.c[i])
    return x, t, y

def k2_fft(a):
    vm = VM(a)
    S_KB = 16
    S_ZB = 20
    a.s_mul_i32(s(S_KB), s(2), 24576)
    if WS_C: a.s_add_u32(s(S_KB), s(S_KB), WS_C)
    for i in range(1, 4): a.s_add_u32(s(S_KB + i), s(S_KB), 6144 * i)
    a.s_lshl_b32(s(S_ZB), s(2), 14)
    a.s_add_u32(s(S_ZB), s(S_ZB), WS_ZT)
    for i in range(1, 4): a.s_add_u32(s(S_ZB + i), s(S_ZB), 4096 * i)
    a.v_lshrrev_b32(v(2), 2, v(0)); a.v_mul_u32_u24(v(2), 96, v(2))
    a.v_and_b32(v(3), 3, v(0)); a.v_lshl_add_u32(v(2), v(3), 4, v(2))
    a.v_lshrrev_b32(v(3), 1, v(V_LANE)); a.v_mul_u32_u24(v(3), 96, v(3))
    a.v_and_b32(v(4), 1, v(V_LANE)); a.v_lshl_add_u32(v(3), v(4), 4, v(3))
    a.s_lshl_b32(s(24), s(S_WAVE), 2); a.s_add_u32(s(24), s(24), 64)
    a.v_add_u32(v(3), s(24), v(3))
    a.s_waitcnt("lgkmcnt(0)")
    srd(a, S_WS, 32, WS_BYTES)
    XQ = 8
    Q = [Qd(XQ + 4 * i) for i in range(4)]
    TQ = [Qd(24), Qd(28)]
    for i in range(4):
        a.buffer_load_dwordx4(Q[i].quad, v(2), sr(S_WS, 4), s(S_KB + i), mod="offen"); vm.issue("x")
    WV = 32
    for j in range(8):
        a.buffer_load_dword(v(WV + j), v(3), sr(S_WS, 4), s(S_KB + (j >> 1)), mod="offen offset:%d" % ((j & 1) * 3072)); vm.issue("w")
    TW1, TW2, TW4 = 40, 54, 70
    twiddle_setup(a, v(V_LANE), TW1, TW2, v(4), v(5), v(6))
    a.v_lshlrev_b32(v(4), 1, v(0)); a.v_cvt_f32_u32(v(4), v(4)); a.v_add_f32(v(5), 1.0, v(4))
    for b in range(1, 4):
        for mi in range(2):
            a.v_mul_f32(v(6), flit(-b / 2048.0), v(4 + mi))
            a.v_cos_f32(v(TW4 + (b - 1) * 4 + mi * 2), v(6))
            a.v_sin_f32(v(TW4 + (b - 1) * 4 + mi * 2 + 1), v(6))
    S_SCR = 25
    a.s_mul_i32(s(S_SCR), s(S_WAVE), 4608)
    W1, R1, W2, R2 = v(82), v(83), v(84), v(85)
    exch_addr_setup(a, v(V_LANE), W1, R1, W2, R2, v(4), v(5), base_sgpr=s(S_SCR))
    VT16 = v(86)
    a.v_lshlrev_b32(VT16, 4, v(0))
    t1, t2 = v(87), v(88)
    vm.wait("x")
    T = list(TQ)
    t = T.pop(); t0_, t1_, fr = qbf(a, bf, Q[0], Q[2], t); T.append(fr)
    t = T.pop(); t2_, t3_, fr = qbf(a, bf, Q[1], Q[3], t); T.append(fr)
    Y = [None] * 4
    t = T.pop(); Y[0], Y[2], fr = qbf(a, bf, t0_, t2_, t); T.append(fr)
    t = T.pop(); Y[1], Y[3], fr = qbf(a, bf_mi, t1_, t3_, t); T.append(fr)
    for b in range(1, 4):
        for mi in range(2):
            cmul(a, Y[b].c[mi], v(TW4 + (b - 1) * 4 + mi * 2), v(TW4 + (b - 1) * 4 + mi * 2 + 1), t1, t2)
    for b in range(4):
        a.ds_write_b128(VT16, Y[b].quad, mod="offset:%d" % (b * 4608))
    a.s_waitcnt("lgkmcnt(0)")
    a.s_barrier()
    X = [Cx(8 + 2 * j) for j in range(8)]
    TT = [Cx(24 + 2 * j) for j in range(4)]
    for j in range(8):
        a.ds_read_b64(X[j].pair, R2, mod="offset:%d" % (512 * j))
    a.s_waitcnt("lgkmcnt(0)")
    out, TT = fft512(a, X, TT, TW1, TW2, W1, R1, W2, R2, s(S_SQH), t1, t2)
    vm.wait("w")
    sc = 2.0 ** -21
    for j in range(8):
        wr, wi = v(4), v(5)
        a.v_lshlrev_b32(wr, 16, v(WV + j)); a.v_and_b32(wi, "0xffff0000", v(WV + j))
        a.v_mul_f32(wr, flit(sc), wr); a.v_mul_f32(wi, flit(sc), wi)
        cmul(a, out[j], wr, wi, t1, t2)
    Xs = [Cx(o.base, True) for o in out]; Ts = [Cx(o.base, True) for o in TT]
    out, TT = fft512(a, Xs, Ts, TW1, TW2, W1, R1, W2, R2, s(S_SQH), t1, t2)
    for j in range(8):
        a.ds_write_b64(R2, out[j].pair, mod="offset:%d" % (512 * j))
    a.s_waitcnt("lgkmcnt(0)")
    a.s_barrier()
    U = [Qd(XQ + 4 * i) for i in range(4)]
    for b in range(4):
        a.ds_read_b128(U[b].quad, VT16, mod="offset:%d" % (b * 4608))
    for b in range(1, 4):
        a.s_waitcnt("lgkmcnt(%d)" % (3 - b))
        for mi in range(2):
            cmul_conj(a, U[b].c[mi], v(TW4 + (b - 1) * 4 + mi * 2), v(TW4 + (b - 1) * 4 + mi * 2 + 1), t1, t2)
    T = list(TQ)
    t = T.pop(); t0_, t1_, fr = qbf(a, bf, U[0], U[2], t); T.append(fr)
    t = T.pop(); t2_, t3_, fr = qbf(a, bf, U[1], U[3], t); T.append(fr)
    Z = [None] * 4
    t = T.pop(); Z[0], Z[2], fr = qbf(a, bf, t0_, t2_, t); T.append(fr)
    t = T.pop(); Z[3], Z[1], fr = qbf(a, bf_mi, t1_, t3_, t); T.append(fr)
    for i in range(4):
        a.buffer_store_dwordx4(Z[i].quad, VT16, sr(S_WS, 4), s(S_ZB + i), mod="offen")
    a.s_endpgm()

def k2_gemm(a, D=4):
    vm = VM(a)
    NS = 11
    S_T, S_MB, S_NB = 16, 17, 18
    a.s_sub_u32(s(S_T), s(2), 257)
    a.s_and_b32(s(S_MB), s(S_T), 7); a.s_lshl_b32(s(S_MB), s(S_MB), 2)
    a.s_lshr_b32(s(19), s(S_T), 3); a.s_and_b32(s(19), s(19), 3); a.s_add_u32(s(S_MB), s(S_MB), s(19))
    a.s_lshr_b32(s(S_NB), s(S_T), 5)
    S_HO = 20
    a.s_mul_i32(s(S_HO), s(S_MB), 44); a.s_add_u32(s(S_HO), s(S_HO), s(S_WAVE)); a.s_lshl_b32(s(S_HO), s(S_HO), 12)
    a.s_add_u32(s(S_HO), s(S_HO), WS_H)
    L = v(V_LANE)
    VHO = 2
    a.v_and_b32(v(10), 15, L); a.v_lshrrev_b32(v(11), 4, L)
    a.v_lshlrev_b32(v(VHO), 6, v(10)); a.v_lshl_add_u32(v(VHO), v(11), 4, v(VHO))
    VD = 4
    a.v_lshrrev_b32(v(10), 5, L); a.v_lshlrev_b32(v(10), 3, v(10))
    a.v_bfe_u32(v(11), L, 3, 2); a.v_add_u32(v(10), v(10), v(11))
    a.v_lshlrev_b32(v(10), 10, v(10))
    a.v_bfe_u32(v(11), L, 1, 2); a.v_bfe_u32(v(12), L, 4, 2); a.v_xor_b32(v(11), v(11), v(12))
    a.v_lshl_add_u32(v(10), v(11), 5, v(10))
    a.v_and_b32(v(11), 1, L); a.v_lshl_add_u32(v(10), v(11), 4, v(10))
    a.s_lshl_b32(s(21), s(S_NB), 7); a.s_lshl_b32(s(22), s(S_WAVE), 15); a.s_add_u32(s(21), s(21), s(22))
    a.v_add_u32(v(VD), s(21), v(10))
    for d in range(1, 4):
        a.v_add_u32(v(VD + d), (16 * (d & 1) + 4 * (d >> 1)) * 1024, v(VD))
    VR = 12
    S_RB = 23
    a.s_mul_i32(s(S_RB), s(S_WAVE), D * 4096)
    a.v_lshrrev_b32(v(10), 2, L); a.v_lshlrev_b32(v(10), 7, v(10))
    a.v_and_b32(v(11), 3, L); a.v_lshl_add_u32(v(10), v(11), 3, v(10))
    a.v_add_u32(v(10), s(S_RB), v(10))
    a.v_bfe_u32(v(11), L, 3, 2)
    for nt in range(4):
        a.v_xor_b32(v(8), nt, v(11))
        a.v_lshl_add_u32(v(VR + nt), v(8), 5, v(10))
    a.s_waitcnt("lgkmcnt(0)")
    srd(a, S_WS, 32, WS_BYTES)
    srd(a, S_WD, 34, 1376 * 1024)
    HF = 16
    WF = HF + 16 * D
    ACC = WF + 16
    assert ACC + 64 <= K2_VGPR
    def acc(nt, mt): return vr(ACC + (nt * 4 + mt) * 4, 4)
    def loads(i):
        sl = i % D
        for mt in range(4):
            a.buffer_load_dwordx4(vr(HF + sl * 16 + mt * 4, 4), v(VHO), sr(S_WS, 4), s(S_HO), mod="offen offset:%d" % (mt * 1024)); vm.issue("st%d" % i)
        for d in range(4):
            a.s_add_u32("m0", s(S_RB), sl * 4096 + d * 1024)
            a.buffer_load_dwordx4(v(VD + d), sr(S_WD, 4), 0, mod="offen lds"); vm.issue("st%d" % i)
        a.s_add_u32(s(S_HO), s(S_HO), 16384)
        for d in range(4): a.v_add_u32(v(VD + d), 131072, v(VD + d))
    for i in range(D - 1): loads(i)
    for i in range(NS):
        sl = i % D
        vm.wait("st%d" % i)
        for nt in range(4):
            for h in range(2):
                a.ds_read_b64_tr_b16(vr(WF + nt * 4 + h * 2, 2), v(VR + nt), mod="offset:%d" % (sl * 4096 + h * 2048))
        if i + D - 1 < NS: loads(i + D - 1)
        for nt in range(4):
            a.s_waitcnt("lgkmcnt(%d)" % (6 - 2 * nt))
            for mt in range(4):
                a.v_mfma_f32_16x16x32_bf16(acc(nt, mt), vr(WF + nt * 4, 4), vr(HF + sl * 16 + mt * 4, 4), acc(nt, mt) if i else 0)
    a.s_barrier()
    a.v_lshlrev_b32(v(10), 4, L)
    a.s_lshl_b32(s(21), s(S_WAVE), 14)
    a.v_add_u32(v(11), s(21), v(10))
    a.s_lshl_b32(s(21), s(S_WAVE), 12)
    a.v_add_u32(v(10), s(21), v(10))
    for mt in range(4):
        for nt in range(4):
            a.ds_write_b128(v(11), acc(nt, mt), mod="offset:%d" % ((mt * 4 + nt) * 1024))
    a.s_waitcnt("lgkmcnt(0)")
    a.s_barrier()
    R = 16
    for nt in range(4):
        for src in range(4):
            a.ds_read_b128(vr(R + (nt * 4 + src) * 4, 4), v(10), mod="offset:%d" % (src * 16384 + nt * 1024))
    a.s_lshl_b32(s(21), s(S_MB), 6); a.s_lshl_b32(s(22), s(S_WAVE), 4); a.s_add_u32(s(21), s(21), s(22))
    a.s_lshl_b32(s(21), s(21), 10); a.s_lshl_b32(s(22), s(S_NB), 7); a.s_add_u32(s(21), s(21), s(22)); a.s_add_u32(s(21), s(21), WS_G)
    a.v_and_b32(v(8), 15, L); a.v_lshrrev_b32(v(9), 4, L)
    a.v_lshlrev_b32(v(8), 10, v(8)); a.v_lshl_add_u32(v(8), v(9), 3, v(8))
    nl2e = -math.log2(math.e)
    for nt in range(4):
        a.s_waitcnt("lgkmcnt(%d)" % (12 - 4 * nt))
        b = R + nt * 16
        for d in (0, 2):
            a.v_pk_add_f32(vr(b + d, 2), vr(b + d, 2), vr(b + 4 + d, 2))
            a.v_pk_add_f32(vr(b + 8 + d, 2), vr(b + 8 + d, 2), vr(b + 12 + d, 2))
        for d in (0, 2):
            a.v_pk_add_f32(vr(b + d, 2), vr(b + d, 2), vr(b + 8 + d, 2))
        for d in range(4): a.v_cvt_pk_bf16_f32(v(b + d), 0, v(b + d))
        for d in range(4): a.v_mul_f32(v(b + 4 + d), flit(nl2e), v(b + d))
        for d in range(4): a.v_exp_f32(v(b + 4 + d), v(b + 4 + d))
        for d in range(4): a.v_add_f32(v(b + 4 + d), 1.0, v(b + 4 + d))
        for d in range(4): a.v_rcp_f32(v(b + 4 + d), v(b + 4 + d))
        for d in range(4): a.v_mul_f32(v(b + d), v(b + d), v(b + 4 + d))
        a.v_cvt_pk_bf16_f32(v(b + 8), v(b), v(b + 1)); a.v_cvt_pk_bf16_f32(v(b + 9), v(b + 2), v(b + 3))
        a.buffer_store_dwordx2(vr(b + 8, 2), v(8), sr(S_WS, 4), s(21), mod="offen offset:%d" % (nt * 32))
    a.s_endpgm()

def k2(a):
    a.label("k2_kernel")
    a.s_cmp_ge_u32(s(2), 513)
    a.s_cbranch_scc1("K2_END")
    a.s_load_dwordx2(sr(32, 2), sr(0, 2), 72)
    a.s_load_dwordx2(sr(34, 2), sr(0, 2), 48)
    a.v_and_b32(v(V_LANE), 63, v(0))
    a.v_lshrrev_b32(v(2), 6, v(0))
    a.v_readfirstlane_b32(s(S_WAVE), v(2))
    a.s_mov_b32(s(S_SQH), flit(SQH))
    a.s_cmp_ge_u32(s(2), 257)
    a.s_cbranch_scc1("K2_GEMM")
    k2_fft(a)
    a.label("K2_GEMM")
    a.s_nop(7)
    k2_gemm(a)
    a.label("K2_END")
    a.s_endpgm()
```

```python
from dsl import *
from fftcore import *
from k1 import VM, srd, WS_C, WS_ZT, WS_H, WS_G, WS_BYTES
import math

K3_LDS = 4 * 4608
K3_VGPR = 128

S_WS, S_X, S_O = 4, 8, 12
S_WAVE, S_SQH = 16, 17
V_LANE = 1

def k3(a):
    a.label("k3_kernel")
    a.s_cmp_ge_u32(s(2), 256)
    a.s_cbranch_scc1("K3_END")
    a.s_load_dwordx2(sr(32, 2), sr(0, 2), 72)
    a.s_load_dwordx2(sr(34, 2), sr(0, 2), 0)
    a.s_load_dwordx2(sr(36, 2), sr(0, 2), 56)
    L = v(V_LANE)
    a.v_and_b32(L, 63, v(0))
    a.v_lshrrev_b32(v(2), 6, v(0))
    a.v_readfirstlane_b32(s(S_WAVE), v(2))
    a.s_mov_b32(s(S_SQH), flit(SQH))
    vm = VM(a)
    S_S0 = 18
    a.s_lshl_b32(s(S_S0), s(2), 3); a.s_lshl_b32(s(19), s(S_WAVE), 1); a.s_add_u32(s(S_S0), s(S_S0), s(19))
    S_ZB = 20
    a.s_lshl_b32(s(S_ZB), s(S_S0), 3); a.s_add_u32(s(S_ZB), s(S_ZB), WS_ZT)
    for j in range(1, 5): a.s_add_u32(s(S_ZB + j), s(S_ZB), j * 64 * 16384)
    S_XO, S_GO = 25, 26
    a.s_lshl_b32(s(S_XO), s(S_S0), 10)
    a.s_add_u32(s(S_GO), s(S_XO), WS_G)
    a.v_lshlrev_b32(v(2), 14, L)
    a.v_mov_b32(v(3), 0)
    a.v_lshlrev_b32(v(4), 4, L)
    a.s_waitcnt("lgkmcnt(0)")
    srd(a, S_WS, 32, WS_BYTES); srd(a, S_X, 34, 2048 * 1024); srd(a, S_O, 36, 2048 * 1024)
    ZQ = 8
    for j in range(4):
        a.buffer_load_dwordx4(vr(ZQ + 4 * j, 4), v(2), sr(S_WS, 4), s(S_ZB + j), mod="offen"); vm.issue("z")
    a.buffer_load_dwordx4(vr(ZQ + 16, 4), v(3), sr(S_WS, 4), s(S_ZB + 4), mod="offen"); vm.issue("z")
    XR, GR = 96, 104
    for row in range(2):
        a.buffer_load_dwordx4(vr(XR + 4 * row, 4), v(4), sr(S_X, 4), s(S_XO), mod="offen offset:%d" % (row * 1024)); vm.issue("x")
        a.buffer_load_dwordx4(vr(GR + 4 * row, 4), v(4), sr(S_WS, 4), s(S_GO), mod="offen offset:%d" % (row * 1024)); vm.issue("x")
    TW1, TW2 = 56, 70
    twiddle_setup(a, L, TW1, TW2, v(5), v(6), v(7))
    S_SCR = 27
    a.s_mul_i32(s(S_SCR), s(S_WAVE), 4608)
    W1, R1, W2, R2 = v(86), v(87), v(88), v(89)
    exch_addr_setup(a, L, W1, R1, W2, R2, v(5), v(6), base_sgpr=s(S_SCR))
    VMR = v(90)
    a.v_sub_u32(VMR, 320, L); a.v_lshlrev_b32(VMR, 3, VMR); a.v_add_u32(VMR, s(S_SCR), VMR)
    VS = v(91)
    a.v_mov_b32(VS, s(S_SCR))
    VP4, VP32 = v(92), v(93)
    a.v_lshlrev_b32(VP4, 2, L); a.v_add_u32(VP4, s(S_SCR), VP4)
    a.v_lshlrev_b32(VP32, 5, L); a.v_add_u32(VP32, s(S_SCR), VP32)
    t1, t2 = v(94), v(95)
    a.v_cmp_eq_u32("vcc", 0, L)
    DX = 32
    X = [Cx(DX + 2 * j, True) for j in range(8)]
    T = [Cx(48 + 2 * j, True) for j in range(4)]
    vm.wait("z")
    a.v_cndmask_b32(v(ZQ + 1), v(ZQ + 1), v(3), "vcc"); a.v_cndmask_b32(v(ZQ + 3), v(ZQ + 3), v(3), "vcc")
    for j in range(4):
        ar, ai, br, bi = [v(ZQ + 4 * j + i) for i in range(4)]
        a.v_sub_f32(v(DX + 2 * j), ar, bi); a.v_add_f32(v(DX + 2 * j + 1), ai, br)
        a.v_add_f32(v(48 + 2 * j), ar, bi); a.v_sub_f32(v(48 + 2 * j + 1), br, ai)
        a.ds_write_b64(VMR, vr(48 + 2 * j, 2), mod="offset:%d" % ((3 - j) * 512))
    a.v_mov_b32(v(ZQ + 17), v(ZQ + 18))
    a.ds_write_b64(VS, vr(ZQ + 16, 2), mod="offset:2048")
    for j in range(4, 8):
        a.ds_read_b64(vr(DX + 2 * j, 2), R2, mod="offset:%d" % (512 * j))
    a.s_waitcnt("lgkmcnt(0)")
    out, T = fft512(a, X, T, TW1, TW2, W1, R1, W2, R2, s(S_SQH), t1, t2)
    for j in range(8):
        a.v_cvt_pk_bf16_f32(v(out[j].base), v(out[j].base), v(out[j].base + 1))
        a.ds_write_b32(VP4, v(out[j].base), mod="offset:%d" % (256 * j))
    P = 8
    a.ds_read_b128(vr(P, 4), VP32); a.ds_read_b128(vr(P + 4, 4), VP32, mod="offset:16")
    vm.wait("x")
    a.s_waitcnt("lgkmcnt(0)")
    M = "0xffff0000"
    a.s_mov_b32(s(28), M)
    for row in range(2):
        Sg, Gg, Xg = 16, 24, 32
        for e in range(8):
            if row == 0: a.v_lshlrev_b32(v(Sg + e), 16, v(P + e))
            else: a.v_and_b32(v(Sg + e), s(28), v(P + e))
        for d in range(4):
            a.v_lshlrev_b32(v(Gg + 2 * d), 16, v(GR + 4 * row + d)); a.v_and_b32(v(Gg + 2 * d + 1), s(28), v(GR + 4 * row + d))
            a.v_lshlrev_b32(v(Xg + 2 * d), 16, v(XR + 4 * row + d)); a.v_and_b32(v(Xg + 2 * d + 1), s(28), v(XR + 4 * row + d))
        for d in range(4): a.v_pk_mul_f32(vr(Sg + 2 * d, 2), vr(Sg + 2 * d, 2), vr(Gg + 2 * d, 2))
        for e in range(8): a.v_cvt_pk_bf16_f32(v(Sg + e), 0, v(Sg + e))
        for d in range(4): a.v_pk_add_f32(vr(Sg + 2 * d, 2), vr(Sg + 2 * d, 2), vr(Xg + 2 * d, 2))
        O = 40 + 4 * row
        for d in range(4): a.v_cvt_pk_bf16_f32(v(O + d), v(Sg + 2 * d), v(Sg + 2 * d + 1))
        a.buffer_store_dwordx4(vr(O, 4), v(4), sr(S_O, 4), s(S_XO), mod="offen offset:%d" % (row * 1024))
    a.label("K3_END")
    a.s_endpgm()
```

```python
import sys
from dsl import *
import k1 as K1

def desc(name, vgpr, sgpr=96):
    acc = (vgpr + 3) // 4 * 4
    return f""".amdhsa_kernel {name}
  .amdhsa_next_free_vgpr {vgpr}
  .amdhsa_next_free_sgpr {sgpr}
  .amdhsa_accum_offset {acc}
  .amdhsa_group_segment_fixed_size 0
  .amdhsa_kernarg_size 80
  .amdhsa_user_sgpr_count 2
  .amdhsa_user_sgpr_kernarg_segment_ptr 1
  .amdhsa_system_sgpr_workgroup_id_x 1
.end_amdhsa_kernel
"""

def build(kernels):
    head = ["; fused LN + GFNet spectral filter + GEGLU MLP gate, generated by dev/gen.py"]
    for (name, fn, grid, block, lds, vg) in kernels:
        head.append(f"; @launch kernel={name} grid=({grid},1,1) block=({block},1,1) lds={lds}")
    out = head + ['.amdgcn_target "amdgcn-amd-amdhsa--gfx950"', ".text"]
    for (name, fn, grid, block, lds, vg) in kernels:
        a = Asm()
        fn(a)
        lines, n = hazard_fix(a.lines)
        print(name, "lines", len(lines), "nops inserted", n, file=sys.stderr)
        out += [f".globl {name}", ".p2align 8", f".type {name},@function"] + lines
    out += ['.section .rodata,"a"']
    for (name, fn, grid, block, lds, vg) in kernels:
        out += [".p2align 6", desc(name, vg)]
    return "\n".join(out) + "\n"

if __name__ == "__main__":
    which = sys.argv[1] if len(sys.argv) > 1 else "all"
    ks = [("k1_kernel", K1.k1, 256, 512, K1.K1_LDS, 224)]
    if which in ("all", "k12"):
        import k2 as K2
        ks.append(("k2_kernel", K2.k2, 513, 256, K2.K2_LDS, K2.K2_VGPR))
    if which == "all":
        import k3 as K3
        ks.append(("k3_kernel", K3.k3, 256, 256, K3.K3_LDS, K3.K3_VGPR))
    dst = sys.argv[2] if len(sys.argv) > 2 else "test.s"
    open(dst, "w").write(build(ks))
```

```python
from dsl import *
from fftcore import *
import math

WS_C = 0
WS_ZT = 0x700000
WS_H = 0xC00000
WS_G = 0x1200000
WS_BYTES = 0x1400000

class VM:
    def __init__(self, a, ops=None):
        self.a = a; self.ops = list(ops) if ops else []
    def issue(self, tag): self.ops.append(tag)
    def wait(self, tag):
        idx = max(i for i, t in enumerate(self.ops) if t == tag)
        n = len(self.ops) - 1 - idx
        assert n < 64
        self.a.s_waitcnt("vmcnt(%d)" % n)

def srd(a, dst, lo, nbytes):
    a.s_mov_b32(s(dst), s(lo)); a.s_mov_b32(s(dst + 1), s(lo + 1))
    a.s_mov_b32(s(dst + 2), "0x%x" % nbytes); a.s_mov_b32(s(dst + 3), "0x00020000")

STAMPS = False
WS_DBG = 0x1380000
def stamp(a, i):
    if not STAMPS: return
    a.s_memtime(sr(80, 2))
    a.s_waitcnt("lgkmcnt(0)")
    a.s_mov_b32(s(64 + i), s(80))
    if i == 0:
        a.s_memrealtime(sr(80, 2))
        a.s_waitcnt("lgkmcnt(0)")
        a.s_mov_b32(s(79), s(80))
def stamp_out(a, n, srd_ws, s_wave, nw=8):
    if not STAMPS: return
    a.s_memrealtime(sr(80, 2))
    a.s_waitcnt("lgkmcnt(0)")
    a.s_mov_b32(s(64 + n), s(80))
    a.s_mul_i32(s(82), s(2), nw)
    a.s_add_u32(s(82), s(82), s(s_wave))
    a.s_lshl_b32(s(82), s(82), 6)
    a.s_add_u32(s(82), s(82), WS_DBG)
    a.v_mov_b32(v(0), 0)
    for i in range(n + 1):
        a.v_mov_b32(v(2), s(64 + i))
        a.buffer_store_dword(v(2), v(0), sr(srd_ws, 4), s(82), mod="offen offset:%d" % (4 * i))
        a.s_nop(3)
    a.v_mov_b32(v(2), s(79))
    a.buffer_store_dword(v(2), v(0), sr(srd_ws, 4), s(82), mod="offen offset:60")

A_OFF = 0
RING = 65536
SLOT = 24576
GATH = RING + 3 * SLOT
K1_LDS = GATH + 24576

S_X, S_WG, S_WU, S_WS, S_WR, S_WI = 4, 8, 12, 16, 20, 24
S_WAVE, S_NG, S_MB, S_W4 = 28, 29, 30, 31
S_XO0, S_XO1 = 46, 47
S_ONES, S_ONELO, S_ONEHI, S_SQH = 48, 49, 50, 51

V_LANE = 1
XD = 8

def ln(a, vm):
    ST = 40
    for i in range(8): a.v_mov_b32(v(ST + i), 0)
    for p in range(2):
        vm.wait("x%d" % p)
        for i in range(16):
            x = v(XD + p * 16 + i)
            a.v_dot2c_f32_bf16(v(ST + p * 4 + (i & 1)), s(S_ONES), x)
            a.v_dot2c_f32_bf16(v(ST + p * 4 + 2 + (i & 1)), x, x)
    for p in range(2):
        a.v_add_f32(v(ST + p * 4), v(ST + p * 4), v(ST + p * 4 + 1))
        a.v_add_f32(v(ST + p * 4 + 2), v(ST + p * 4 + 2), v(ST + p * 4 + 3))
    for r in (8, 4, 2, 1):
        for p in range(2):
            for q in (0, 2):
                x = v(ST + p * 4 + q)
                a.v_add_f32_dpp(x, x, x, mod="row_ror:%d row_mask:0xf bank_mask:0xf" % r)
    for p in range(2):
        a.v_mul_f32(v(ST + p * 4), flit(1 / 512.), v(ST + p * 4))
        a.v_mul_f32(v(ST + p * 4 + 2), flit(1 / 512.), v(ST + p * 4 + 2))
    for p in range(2):
        a.v_fma_f32(v(ST + p * 4 + 2), "-" + v(ST + p * 4), v(ST + p * 4), v(ST + p * 4 + 2))
        a.v_cvt_pk_bf16_f32(v(48 + p), 0, "-" + v(ST + p * 4))
    for p in range(2):
        a.v_cvt_pk_bf16_f32(v(ST + p * 4 + 2), 0, v(ST + p * 4 + 2))
    for p in range(2):
        a.v_add_f32(v(ST + p * 4 + 2), flit(1e-5), v(ST + p * 4 + 2))
    for p in range(2):
        a.v_cvt_pk_bf16_f32(v(ST + p * 4 + 2), 0, v(ST + p * 4 + 2))
    for p in range(2):
        a.v_sqrt_f32(v(ST + p * 4 + 2), v(ST + p * 4 + 2))
    for p in range(2):
        a.v_cvt_pk_bf16_f32(v(ST + p * 4 + 2), 0, v(ST + p * 4 + 2))
    for p in range(2):
        a.v_rcp_f32(v(50 + 2 * p), v(ST + p * 4 + 2))
    T = 56
    for p in range(2):
        for j in range(4):
            xb = XD + p * 16 + j * 4
            for d in range(4):
                a.v_dot2_f32_bf16(v(T + 2 * d), v(xb + d), s(S_ONELO), v(48 + p))
                a.v_dot2_f32_bf16(v(T + 2 * d + 1), v(xb + d), s(S_ONEHI), v(48 + p))
            for d in range(8):
                a.v_cvt_pk_bf16_f32(v(T + d), 0, v(T + d))
            for d in range(4):
                a.v_pk_mul_f32(vr(T + 2 * d, 2), vr(T + 2 * d, 2), vr(50 + 2 * p, 2), mod="op_sel_hi:[1,0]")
            for d in range(4):
                a.v_cvt_pk_bf16_f32(v(xb + d), v(T + 2 * d), v(T + 2 * d + 1))
            a.ds_write_b128(v(4 + p), vr(xb, 4), mod="offset:%d" % (j * 256))

EXP = ''
def k1(a, NF1=12):
    a.label("k1_kernel")
    a.s_cmp_ge_u32(s(2), 256)
    a.s_cbranch_scc1("K1_END")
    a.s_load_dwordx4(sr(32, 4), sr(0, 2), 0)
    a.s_load_dwordx2(sr(36, 2), sr(0, 2), 16)
    a.s_load_dwordx4(sr(40, 4), sr(0, 2), 32)
    a.s_load_dwordx2(sr(44, 2), sr(0, 2), 72)
    a.v_and_b32(v(V_LANE), 63, v(0))
    a.v_lshrrev_b32(v(2), 6, v(0))
    a.v_readfirstlane_b32(s(S_WAVE), v(2))
    a.s_and_b32(s(S_NG), s(2), 7)
    a.s_lshr_b32(s(S_MB), s(2), 3)
    a.s_and_b32(s(S_W4), s(S_WAVE), 3)
    a.s_lshl_b32(s(S_XO0), s(S_MB), 16)
    a.s_lshl_b32(s(52), s(S_WAVE), 13)
    a.s_add_u32(s(S_XO0), s(S_XO0), s(52))
    a.s_add_u32(s(S_XO1), s(S_XO0), 4096)
    a.s_mov_b32(s(S_ONES), "0x3f803f80"); a.s_mov_b32(s(S_ONELO), "0x00003f80"); a.s_mov_b32(s(S_ONEHI), "0x3f800000")
    a.s_mov_b32(s(S_SQH), flit(SQH))
    a.v_lshrrev_b32(v(2), 4, v(V_LANE))
    a.v_and_b32(v(6), 15, v(V_LANE))
    a.v_lshlrev_b32(v(3), 10, v(2))
    a.v_lshl_or_b32(v(3), v(6), 4, v(3))
    a.s_lshl_b32(s(52), s(S_WAVE), 3)
    for p in range(2):
        a.v_add_u32(v(7), s(52), v(2))
        if p: a.v_add_u32(v(7), 4, v(7))
        a.v_and_b32(v(40), 15, v(7))
        a.v_xor_b32(v(40), v(40), v(6))
        a.v_lshlrev_b32(v(7), 10, v(7))
        a.v_lshl_or_b32(v(4 + p), v(40), 4, v(7))
    a.s_waitcnt("lgkmcnt(0)")
    stamp(a, 0)
    srd(a, S_X, 32, 2048 * 1024)
    vm0 = VM(a)
    for p in range(2):
        for j in range(4):
            a.buffer_load_dwordx4(vr(XD + p * 16 + j * 4, 4), v(3), sr(S_X, 4), s(S_XO0 + p), mod="offen offset:%d" % (j * 256))
            vm0.issue("x%d" % p)
    srd(a, S_WG, 40, 512 * 2752); srd(a, S_WU, 42, 512 * 2752); srd(a, S_WS, 44, WS_BYTES)
    srd(a, S_WR, 34, 2048 * 514); srd(a, S_WI, 36, 2048 * 514)
    S_N0 = 53
    a.s_mul_i32(s(S_N0), s(S_NG), 192)
    a.s_mul_i32(s(52), s(S_W4), 48)
    a.s_add_u32(s(S_N0), s(S_N0), s(52))
    a.s_cmp_ge_u32(s(S_WAVE), 4)
    a.s_cbranch_scc1("K1_LOADER")

    vm = VM(a, vm0.ops)
    VA = 112
    VB = 116
    VH = 119
    VB2 = 120
    for q4 in range(4):
        a.v_add_u32(v(40), 4 * q4, v(2))
        a.v_xor_b32(v(40), v(40), v(6))
        a.v_lshlrev_b32(v(41), 10, v(6))
        a.v_lshl_or_b32(v(VA + q4), v(40), 4, v(41))
    a.v_lshrrev_b32(v(40), 2, v(V_LANE))
    a.v_mul_u32_u24(v(40), 384, v(40))
    a.v_and_b32(v(41), 3, v(V_LANE))
    a.v_lshl_add_u32(v(40), v(41), 3, v(40))
    a.v_add_u32(v(40), RING, v(40))
    a.v_bfe_u32(v(41), v(V_LANE), 3, 2)
    a.s_mul_i32(s(52), s(S_W4), 3)
    for j in range(3):
        a.s_add_u32(s(54), s(52), j)
        a.v_xor_b32(v(42), s(54), v(41))
        a.v_lshl_add_u32(v(VB + j), v(42), 5, v(40))
        a.v_add_u32(v(VB2 + j), 2 * SLOT, v(VB + j))
    a.v_lshlrev_b32(v(40), 6, v(6))
    a.v_lshl_or_b32(v(VH), v(2), 3, v(40))
    ln(a, vm)
    a.s_waitcnt("lgkmcnt(0)")
    stamp(a, 1)
    XF = [64, 88 + 0]
    XF = [8, 48]
    WF = [24, 64]
    ACC = 128
    def acc(f, mt): return vr(ACC + (f * 4 + mt) * 4, 4)
    def reads(i):
        st = i & 1; slot = i % 3
        out = []
        def rx(mt):
            out.append(("ds_read_b128", vr(XF[st] + mt * 4, 4), v(VA + (i & 3)), "offset:%d" % (mt * 16384 + (i >> 2) * 256)))
        def rw(f):
            mat, tile = divmod(f, 3)
            for h in range(2):
                out.append(("ds_read_b64_tr_b16", vr(WF[st] + f * 4 + h * 2, 2), v((VB2 if slot == 2 else VB) + tile), "offset:%d" % ((slot & 1) * SLOT + mat * 12288 + h * 6144)))
        rx(0); rw(0); rx(1); rx(2); rx(3)
        for f in range(1, 6): rw(f)
        return out
    def emit_read(r):
        getattr(a, r[0])(r[1], r[2], mod=r[3])
    def mfma(i, f, mt):
        st = i & 1
        a.v_mfma_f32_16x16x32_bf16(acc(f, mt), vr(WF[st] + f * 4, 4), vr(XF[st] + mt * 4, 4), acc(f, mt) if i > 0 else 0)
    a.s_setprio(2)
    a.s_barrier()
    stamp(a, 2)
    for r in reads(0): emit_read(r)
    for i in range(1, 17):
        a.s_waitcnt("lgkmcnt(10)")
        for mt in range(4): mfma(i - 1, 0, mt)
        a.s_waitcnt("lgkmcnt(0)")
        rs = []
        if i < 16:
            a.s_barrier()
            rs = reads(i)
        for f in range(1, 6):
            for mt in range(4):
                if 'nomfma' not in EXP: mfma(i - 1, f, mt)
                if rs: emit_read(rs.pop(0))
        assert not rs
    a.s_setprio(0)
    stamp(a, 3)
    c0 = -2.0 * math.sqrt(2.0 / math.pi) * math.log2(math.e)
    c1 = c0 * 0.044715
    S_C1, S_ONE2 = 54, 56
    a.s_mov_b32(s(S_C1), flit(c1)); a.s_mov_b32(s(S_C1 + 1), flit(c1))
    a.s_mov_b32(s(S_ONE2), flit(1.0)); a.s_mov_b32(s(S_ONE2 + 1), flit(1.0))
    VC0 = 8
    a.v_mov_b32(v(VC0), flit(c0)); a.v_mov_b32(v(VC0 + 1), flit(c0))
    S_HB = 58
    a.s_mul_i32(s(S_HB), s(S_MB), 44 * 4096)
    a.s_add_u32(s(S_HB), s(S_HB), WS_H)
    for j in range(3):
        a.s_add_u32(s(52), s(S_N0), 16 * j)
        a.s_lshr_b32(s(59), s(52), 4)
        a.s_cmp_ge_u32(s(59), 88)
        a.s_cbranch_scc1("K1_GEND")
        a.s_cmp_lt_u32(s(59), 86)
        a.s_cselect_b32(s(60), -1, 0)
        a.s_lshr_b32(s(61), s(52), 5)
        a.s_lshl_b32(s(61), s(61), 12)
        a.s_and_b32(s(62), s(52), 16)
        a.s_lshl_b32(s(62), s(62), 1)
        a.s_add_u32(s(61), s(61), s(62))
        a.s_add_u32(s(61), s(61), s(S_HB))
        for mt in range(4):
            G = ACC + (j * 4 + mt) * 4; U = ACC + ((3 + j) * 4 + mt) * 4
            T = 16 + (mt & 1) * 8
            for d in range(4): a.v_cvt_pk_bf16_f32(v(G + d), 0, v(G + d))
            for d in range(4): a.v_cvt_pk_bf16_f32(v(U + d), 0, v(U + d))
            for d in (0, 2): a.v_pk_mul_f32(vr(T + d, 2), vr(G + d, 2), vr(G + d, 2))
            for d in (0, 2): a.v_pk_fma_f32(vr(T + d, 2), vr(T + d, 2), sr(S_C1, 2), vr(VC0, 2))
            for d in (0, 2): a.v_pk_mul_f32(vr(T + d, 2), vr(T + d, 2), vr(G + d, 2))
            for d in range(4): a.v_exp_f32(v(T + d), v(T + d))
            for d in (0, 2): a.v_pk_add_f32(vr(T + d, 2), vr(T + d, 2), sr(S_ONE2, 2))
            for d in range(4): a.v_rcp_f32(v(T + d), v(T + d))
            for d in (0, 2): a.v_pk_mul_f32(vr(T + d, 2), vr(T + d, 2), vr(G + d, 2))
            for d in range(4): a.v_cvt_pk_bf16_f32(v(T + d), 0, v(T + d))
            for d in (0, 2): a.v_pk_mul_f32(vr(T + d, 2), vr(T + d, 2), vr(U + d, 2))
            a.v_cvt_pk_bf16_f32(v(G), v(T), v(T + 1)); a.v_cvt_pk_bf16_f32(v(G + 1), v(T + 2), v(T + 3))
            a.v_and_b32(v(G), s(60), v(G)); a.v_and_b32(v(G + 1), s(60), v(G + 1))
            a.buffer_store_dwordx2(vr(G, 2), v(VH), sr(S_WS, 4), s(61), mod="offen offset:%d" % (mt * 1024))
    a.label("K1_GEND")
    stamp(a, 4)
    if STAMPS: a.s_waitcnt("vmcnt(0)")
    stamp(a, 5)
    stamp_out(a, 6, S_WS, S_WAVE)
    a.s_endpgm()

    a.label("K1_LOADER")
    a.s_nop(7)
    vm = VM(a, vm0.ops)
    VD = 64
    a.s_mul_i32(s(52), s(S_NG), 384)
    a.s_mul_i32(s(54), s(S_W4), 192)
    for i in range(3):
        a.v_add_u32(v(40), s(54), v(V_LANE))
        if i: a.v_add_u32(v(40), 64 * i, v(40))
        a.v_mul_u32_u24(v(41), "0xaab", v(40))
        a.v_lshrrev_b32(v(41), 16, v(41))
        a.v_mul_u32_u24(v(42), 24, v(41))
        a.v_sub_u32(v(42), v(40), v(42))
        a.v_lshrrev_b32(v(43), 4, v(41))
        a.v_bfe_u32(v(44), v(41), 2, 2)
        a.v_and_b32(v(45), 3, v(41))
        a.v_lshl_add_u32(v(45), v(44), 3, v(45))
        a.v_lshl_add_u32(v(45), v(43), 2, v(45))
        a.v_mul_u32_u24(v(45), 2752, v(45))
        a.v_bfe_u32(v(43), v(41), 1, 2)
        a.v_lshrrev_b32(v(44), 1, v(42))
        a.v_xor_b32(v(44), v(44), v(43))
        a.v_lshl_add_u32(v(45), v(44), 5, v(45))
        a.v_and_b32(v(42), 1, v(42))
        a.v_lshl_add_u32(v(45), v(42), 4, v(45))
        a.v_add_u32(v(VD + i), s(52), v(45))
    S_RB = 54
    a.s_mul_i32(s(S_RB), s(S_W4), 3072)
    a.s_add_u32(s(S_RB), s(S_RB), RING)
    def dma(stage):
        slot = stage % 3
        for mat in range(2):
            for i in range(3):
                a.s_add_u32("m0", s(S_RB), slot * SLOT + mat * 12288 + i * 1024)
                a.buffer_load_dwordx4(v(VD + i), sr(S_WG if mat == 0 else S_WU, 4), 0, mod="offen lds")
                vm.issue("st%d" % stage)
        for i in range(3):
            a.v_add_u32(v(VD + i), 32 * 2752, v(VD + i))
    for st in range(3): dma(st)
    S_RA = 55
    S_SB = 56
    a.s_lshl_b32(s(S_RA), s(S_NG), 3)
    a.s_lshl_b32(s(52), s(S_W4), 1)
    a.s_add_u32(s(S_RA), s(S_RA), s(52))
    a.s_lshl_b32(s(52), s(S_MB), 6)
    a.s_add_u32(s(52), s(52), s(S_RA))
    a.s_mul_i32(s(52), s(52), 514)
    a.v_lshlrev_b32(v(40), 1, v(V_LANE))
    a.v_add_u32(v(40), s(52), v(40))
    a.v_mov_b32(v(41), s(52))
    WL = 200
    for row in range(2):
        for arr in range(2):
            for j in range(5):
                if j < 4:
                    a.buffer_load_ushort(v(WL + row * 10 + arr * 5 + j), v(40), sr(S_WR if arr == 0 else S_WI, 4), 0, mod="offen offset:%d" % (row * 514 + j * 128))
                else:
                    a.buffer_load_ushort(v(WL + row * 10 + arr * 5 + j), v(41), sr(S_WR if arr == 0 else S_WI, 4), 0, mod="offen offset:%d" % (row * 514 + 512))
                vm.issue("w")
    a.s_lshl_b32(s(S_SB), s(S_MB), 3)
    a.s_add_u32(s(S_SB), s(S_SB), s(S_NG))
    a.s_mul_i32(s(S_SB), s(S_SB), 96)
    ln(a, vm)
    a.s_waitcnt("lgkmcnt(0)")
    stamp(a, 1)
    f = Asm()
    TW1, TW2 = 70, 84
    twiddle_setup(f, v(V_LANE), TW1, TW2, v(40), v(41), v(42))
    S_SCR = 57
    f.s_mul_i32(s(S_SCR), s(S_W4), 4608)
    f.s_add_u32(s(S_SCR), s(S_SCR), GATH)
    W1, R1, W2, R2 = v(100), v(101), v(102), v(103)
    exch_addr_setup(f, v(V_LANE), W1, R1, W2, R2, v(40), v(41), base_sgpr=s(S_SCR))
    VXR = 104
    f.v_lshrrev_b32(v(40), 3, v(V_LANE))
    f.v_and_b32(v(41), 7, v(V_LANE))
    f.v_lshlrev_b32(v(41), 1, v(41))
    for row in range(2):
        f.s_add_u32(s(52), s(S_RA), row)
        f.s_and_b32(s(58), s(52), 15)
        f.s_lshl_b32(s(52), s(52), 10)
        for par in range(2):
            f.v_add_u32(v(42), 8 * par, v(40))
            f.v_xor_b32(v(42), s(58), v(42))
            f.v_lshl_add_u32(v(42), v(42), 4, v(41))
            f.v_add_u32(v(VXR + row * 2 + par), s(52), v(42))
    VMR = 108
    f.v_sub_u32(v(VMR), 320, v(V_LANE))
    f.v_lshlrev_b32(v(VMR), 3, v(VMR))
    f.v_add_u32(v(VMR), s(S_SCR), v(VMR))
    VGX, VGW = 109, 110
    f.s_lshl_b32(s(52), s(S_W4), 4)
    f.s_add_u32(s(52), s(52), GATH)
    f.v_mul_u32_u24(v(40), 96, v(V_LANE))
    f.v_add_u32(v(VGX), s(52), v(40))
    f.s_lshl_b32(s(52), s(S_W4), 3)
    f.s_add_u32(s(52), s(52), GATH + 64)
    f.v_add_u32(v(VGW), s(52), v(40))
    VGR = 111
    VGO = 112
    f.s_mul_i32(s(52), s(S_W4), 6144)
    f.s_add_u32(s(52), s(52), GATH)
    f.v_lshlrev_b32(v(VGR), 4, v(V_LANE))
    f.v_add_u32(v(VGR), s(52), v(VGR))
    f.s_mul_i32(s(52), s(S_W4), 64 * 24576)
    f.s_add_u32(s(52), s(52), s(S_SB))
    f.s_add_u32(s(52), s(52), WS_C)
    for i in range(6):
        f.v_add_u32(v(40), 64 * i, v(V_LANE))
        f.v_mul_u32_u24(v(41), "0x2aab", v(40))
        f.v_lshrrev_b32(v(41), 16, v(41))
        f.v_mul_u32_u24(v(42), 6, v(41))
        f.v_sub_u32(v(42), v(40), v(42))
        f.v_mul_u32_u24(v(41), 24576, v(41))
        f.v_lshl_add_u32(v(41), v(42), 4, v(41))
        f.v_add_u32(v(VGO + i), s(52), v(41))

    DX = 120
    X = [Cx(DX + 2 * j) for j in range(8)]
    T = [Cx(136), Cx(138), Cx(140)]
    for j in range(8):
        for row in range(2):
            f.ds_read_u16(v(DX + 2 * j + row), v(VXR + row * 2 + (j & 1)), mod="offset:%d" % ((j >> 1) * 256))
    f.s_waitcnt("lgkmcnt(0)")
    for j in range(16): f.v_lshlrev_b32(v(DX + j), 16, v(DX + j))
    out, T = fft512(f, X, T, TW1, TW2, W1, R1, W2, R2, s(S_SQH), v(142), v(143))
    for j in range(4, 8): f.ds_write_b64(R2, out[j].pair, mod="offset:%d" % (512 * j))
    f.ds_write_b64(R2, out[0].pair, mod="offset:4096")
    MR = 144
    for j in range(4): f.ds_read_b64(vr(MR + 2 * j, 2), v(VMR), mod="offset:%d" % ((3 - j) * 512))
    f.s_waitcnt("lgkmcnt(0)")
    Q = 152
    for j in range(4):
        z = out[j]; mr, mi = v(MR + 2 * j), v(MR + 2 * j + 1)
        f.v_add_f32(v(Q + 4 * j), z.re, mr); f.v_sub_f32(v(Q + 4 * j + 1), z.im, mi)
        f.v_add_f32(v(Q + 4 * j + 2), z.im, mi); f.v_sub_f32(v(Q + 4 * j + 3), mr, z.re)
    z = out[4]
    f.v_add_f32(v(Q + 16), z.re, z.re); f.v_mov_b32(v(Q + 17), 0); f.v_add_f32(v(Q + 18), z.im, z.im); f.v_mov_b32(v(Q + 19), 0)
    WP = 172
    fw = Asm()
    for j in range(5):
        for row in range(2):
            fw.v_lshl_or_b32(v(WP + 2 * j + row), v(WL + row * 10 + 5 + j), 16, v(WL + row * 10 + j))
    L = f.lines
    per = (len(L) + NF1 - 1) // NF1
    segs = [L[i * per:(i + 1) * per] for i in range(NF1)]
    assert NF1 >= 4 and NF1 + 2 <= 15
    for i in range(16):
        vm.wait("st%d" % i)
        a.s_barrier()
        if i == 0: stamp(a, 2)
        if i == NF1: stamp(a, 3)
        if 1 <= i <= 13:
            if 'nodma' in EXP: vm.issue("st%d" % (i + 2)); a.buffer_load_dword(v(250), v(VD), sr(S_WG, 4), 0, mod="offen")
            else: dma(i + 2)
        if 'nofft' in EXP: continue
        if i < NF1:
            a.lines += segs[i]
            if i == NF1 - 1: a.lines += fw.lines
        elif i == NF1:
            for j in range(4):
                a.ds_write_b128(v(VGX), vr(Q + 4 * j, 4), mod="offset:%d" % (j * 64 * 96))
                a.ds_write_b64(v(VGW), vr(WP + 2 * j, 2), mod="offset:%d" % (j * 64 * 96))
            a.s_lshl_b32(s(52), s(S_W4), 4)
            a.s_add_u32(s(52), s(52), s(S_SB))
            a.s_add_u32(s(52), s(52), WS_C + 256 * 24576)
            a.s_lshl_b32(s(58), s(S_W4), 3)
            a.s_add_u32(s(58), s(58), s(S_SB))
            a.s_add_u32(s(58), s(58), WS_C + 256 * 24576 + 64)
            a.v_mov_b32(v(40), s(52)); a.v_mov_b32(v(41), s(58))
            a.s_mov_b64("exec", 1)
            a.buffer_store_dwordx4(vr(Q + 16, 4), v(40), sr(S_WS, 4), 0, mod="offen"); vm.issue("s")
            a.buffer_store_dwordx2(vr(WP + 8, 2), v(41), sr(S_WS, 4), 0, mod="offen"); vm.issue("s")
            a.s_mov_b64("exec", -1)
            a.s_waitcnt("lgkmcnt(0)")
        elif i == NF1 + 1:
            for k in range(6):
                a.ds_read_b128(vr(120 + 4 * k, 4), v(VGR), mod="offset:%d" % (k * 1024))
            for k in range(6):
                a.s_waitcnt("lgkmcnt(%d)" % (5 - k))
                a.buffer_store_dwordx4(vr(120 + 4 * k, 4), v(VGO + k), sr(S_WS, 4), 0, mod="offen"); vm.issue("s")
    stamp(a, 4)
    if STAMPS: a.s_waitcnt("vmcnt(0)")
    stamp(a, 5)
    stamp_out(a, 6, S_WS, S_WAVE)
    a.label("K1_END")
    a.s_endpgm()
```

```python
import sys
from dsl import *
import k1 as K1

def desc(name, vgpr, sgpr=96):
    acc = (vgpr + 3) // 4 * 4
    return f""".amdhsa_kernel {name}
  .amdhsa_next_free_vgpr {vgpr}
  .amdhsa_next_free_sgpr {sgpr}
  .amdhsa_accum_offset {acc}
  .amdhsa_group_segment_fixed_size 0
  .amdhsa_kernarg_size 80
  .amdhsa_user_sgpr_count 2
  .amdhsa_user_sgpr_kernarg_segment_ptr 1
  .amdhsa_system_sgpr_workgroup_id_x 1
.end_amdhsa_kernel
"""

def build(kernels):
    head = ["; fused LN + GFNet spectral filter + GEGLU MLP gate, generated by dev/gen.py"]
    for (name, fn, grid, block, lds, vg) in kernels:
        head.append(f"; @launch kernel={name} grid=({grid},1,1) block=({block},1,1) lds={lds}")
    out = head + ['.amdgcn_target "amdgcn-amd-amdhsa--gfx950"', ".text"]
    for (name, fn, grid, block, lds, vg) in kernels:
        a = Asm()
        fn(a)
        lines, n = hazard_fix(a.lines)
        print(name, "lines", len(lines), "nops inserted", n, file=sys.stderr)
        out += [f".globl {name}", ".p2align 8", f".type {name},@function"] + lines
    out += ['.section .rodata,"a"']
    for (name, fn, grid, block, lds, vg) in kernels:
        out += [".p2align 6", desc(name, vg)]
    return "\n".join(out) + "\n"

if __name__ == "__main__":
    which = sys.argv[1] if len(sys.argv) > 1 else "all"
    if len(sys.argv) > 3: K1.EXP = sys.argv[3]
    if which.endswith("+s"):
        K1.STAMPS = True; which = which[:-2]
    ks = [("k1_kernel", K1.k1, 256, 512, K1.K1_LDS, 256)]
    if which in ("all", "k12"):
        import k2 as K2
        ks.append(("k2_kernel", K2.k2, 513, 256, K2.K2_LDS, K2.K2_VGPR))
    if which == "all":
        import k3 as K3
        ks.append(("k3_kernel", K3.k3, 256, 256, K3.K3_LDS, K3.K3_VGPR))
    dst = sys.argv[2] if len(sys.argv) > 2 else "test.s"
    open(dst, "w").write(build(ks))
    sys.path.insert(0, "dev")
    import runner
    runner.build(dst)
    print("assembled", dst, file=sys.stderr)
```

```python
from dsl import *
WS_C = 0
WS_ZT = 0x700000
WS_H = 0xC00000
WS_S = 0x1200000
WS_XN = 0x1400000
WS_WB = 0x1600000
WS_WD = 0x1900000
WS_FLAG = 0x1B00000
WS_BYTES = 0x1C00000
OPT = {"st0": "", "st1": "", "st2": ""}

class VM:
    def __init__(self, a, ops=None):
        self.a = a; self.ops = list(ops) if ops else []
    def issue(self, tag): self.ops.append(tag)
    def count(self, tag):
        idx = max(i for i, t in enumerate(self.ops) if t == tag)
        return len(self.ops) - 1 - idx
    def wait(self, tag):
        n = self.count(tag)
        assert n < 64
        self.a.s_waitcnt("vmcnt(%d)" % n)

def srd(a, dst, lo, nbytes):
    a.s_mov_b32(s(dst), s(lo)); a.s_mov_b32(s(dst + 1), s(lo + 1))
    a.s_mov_b32(s(dst + 2), "0x%x" % nbytes); a.s_mov_b32(s(dst + 3), "0x00020000")

STAMPS = False
WS_DBG = 0x2800000
def stamp(a, i):
    if not STAMPS: return
    if OPT.get("rt"): a.s_memrealtime(sr(80, 2))
    else: a.s_memtime(sr(80, 2))
    a.s_waitcnt("lgkmcnt(0)")
    a.s_mov_b32(s(64 + i), s(80))
def stamp_out(a, n, kidx, s_wave, s_wsptr):
    if not STAMPS: return
    a.s_lshl_b32(s(82), s(2), 3)
    a.s_add_u32(s(82), s(82), s(s_wave))
    a.s_lshl_b32(s(82), s(82), 6)
    a.s_add_u32(s(82), s(82), WS_DBG + kidx * 0x100000)
    a.s_mov_b64("exec", -1)
    a.v_mov_b32(v(0), s(82))
    for i in range(n):
        a.v_mov_b32(v(2), s(64 + i))
        a.s_nop(1)
        a.global_store_dword(v(0), v(2), sr(s_wsptr, 2), mod="offset:%d" % (4 * i))
        a.s_nop(3)
```

```python
import re, struct

def f2u(f):
    return struct.unpack("<I", struct.pack("<f", f))[0]
def flit(f):
    return "0x%08x" % f2u(f)

def v(i): return "v%d" % i
def s(i): return "s%d" % i
def vr(i, n):
    assert n > 1
    return "v[%d:%d]" % (i, i + n - 1)
def sr(i, n): return "s[%d:%d]" % (i, i + n - 1)

TRANS = ("v_exp_f32", "v_log_f32", "v_rcp_f32", "v_rsq_f32", "v_sqrt_f32", "v_sin_f32", "v_cos_f32", "v_rcp_iflag_f32")

_reg_re = re.compile(r"\b([vsa])(\d+)\b|\b([vsa])\[(\d+):(\d+)\]|\b(vcc|exec|m0|scc)\b")

def regs_of(tok):
    out = set()
    for m in _reg_re.finditer(tok):
        if m.group(1):
            out.add((m.group(1), int(m.group(2))))
        elif m.group(3):
            for i in range(int(m.group(4)), int(m.group(5)) + 1):
                out.add((m.group(3), i))
        else:
            out.add((m.group(6), 0))
    return out

class Ins:
    __slots__ = ("text", "op", "kind", "dst", "src", "dpp", "ops", "lds", "nop")
    def __init__(self, text):
        self.text = text
        assert "op_sel:[0,1" not in text, text
        t = text.split(";")[0].strip()
        self.op = t.split()[0] if t else ""
        rest = t[len(self.op):].strip()
        ops = [o.strip() for o in rest.split(",")] if rest else []
        self.ops = ops
        op = self.op
        self.dpp = ("row_" in rest or "quad_perm" in rest or "wave_" in rest or "_dpp" in op)
        self.lds = False
        self.nop = 0
        self.dst = set(); self.src = set()
        if op.endswith(":") or op.startswith("."):
            self.kind = "label"; return
        if op == "s_nop":
            self.kind = "nop"; self.nop = int(ops[0], 0) + 1; return
        if op.startswith("v_mfma"):
            self.kind = "mfma"
            self.dst = regs_of(ops[0]); self.src = set().union(*[regs_of(o) for o in ops[1:]])
            self.srcC = regs_of(ops[3])
            return
        if op.startswith("v_"):
            self.kind = "trans" if op in TRANS else "valu"
            if op.startswith("v_cmp"):
                self.dst = regs_of(ops[0]); self.src = set().union(*[regs_of(o) for o in ops[1:]])
            elif op in ("v_add_co_u32", "v_sub_co_u32", "v_addc_co_u32", "v_subb_co_u32"):
                self.dst = regs_of(ops[0]) | regs_of(ops[1]); self.src = set().union(*[regs_of(o) for o in ops[2:]])
            elif op.startswith("v_permlane") and "swap" in op:
                self.dst = regs_of(ops[0]) | regs_of(ops[1]); self.src = set(self.dst)
            else:
                self.dst = regs_of(ops[0]); self.src = set().union(*[regs_of(o) for o in ops[1:]]) if len(ops) > 1 else set()
                if op.startswith("v_fmac") or op.startswith("v_pk_fmac") or op.startswith("v_dot2c"):
                    self.src |= self.dst
                if op == "v_cndmask_b32" and len(ops) == 3:
                    self.src.add(("vcc", 0))
            return
        if op.startswith("buffer_") or op.startswith("global_"):
            self.kind = "vmem"
            self.lds = bool(re.search(r"\blds\b", rest))
            if "load" in op and not self.lds:
                self.dst = regs_of(ops[0]); self.src = set().union(*[regs_of(o) for o in ops[1:]])
            else:
                self.src = set().union(*[regs_of(o) for o in ops])
                if self.lds: self.src.add(("m0", 0))
            return
        if op.startswith("ds_"):
            self.kind = "ds"
            if "read" in op or "permute" in op or "swizzle" in op:
                self.dst = regs_of(ops[0]); self.src = set().union(*[regs_of(o) for o in ops[1:]])
            else:
                self.src = set().union(*[regs_of(o) for o in ops])
            return
        if op.startswith("s_load") or op.startswith("s_buffer_load"):
            self.kind = "smem"; self.dst = regs_of(ops[0]); self.src = regs_of(ops[1]); return
        if op.startswith("s_"):
            self.kind = "salu"
            if op.startswith("s_cmp") or op.startswith("s_cbranch") or op in ("s_branch", "s_waitcnt", "s_barrier", "s_endpgm", "s_setprio", "s_sleep"):
                self.src = set().union(*[regs_of(o) for o in ops]) if ops else set()
            else:
                self.dst = regs_of(ops[0]); self.src = set().union(*[regs_of(o) for o in ops[1:]]) if len(ops) > 1 else set()
                if "saveexec" in op: self.dst.add(("exec", 0))
            return
        raise ValueError("unknown instr " + text)

class Ins2(Ins):
    __slots__ = ("srcC",)

def mfma_passes(op):
    if "16x16x32" in op or "16x16x16" in op: return 4
    if "32x32x16" in op or "32x32x8" in op: return 8
    raise ValueError(op)

def need(p, c):
    n = 0
    pv = {r for r in p.dst if r[0] in ("v", "a")}
    ps = {r for r in p.dst if r[0] not in ("v", "a")}
    isvalu_p = p.kind in ("valu", "trans")
    if isvalu_p:
        if c.kind in ("valu", "trans"):
            if c.dpp and (pv & c.src): n = max(n, 2)
            if p.kind == "trans" and c.kind != "trans" and (pv & (c.src | c.dst)): n = max(n, 1)
            if c.op in ("v_readfirstlane_b32", "v_readlane_b32") and (pv & c.src): n = max(n, 1)
            if c.op.startswith("v_permlane") and (pv & c.src): n = max(n, 2)
            if ps & c.src:
                n = max(n, 4 if c.op in ("v_readlane_b32", "v_writelane_b32") else 2)
            if ("exec", 0) in ps: n = max(n, 5)
        if c.kind == "mfma":
            if pv & c.src: n = max(n, 2)
            if ("exec", 0) in ps: n = max(n, 4)
        if c.kind == "vmem" and (ps & c.src): n = max(n, 5)
        if c.kind == "ds" and p.kind == "trans" and (pv & c.src): n = max(n, 1)
        if c.kind == "vmem" and p.kind == "trans" and (pv & c.src): n = max(n, 1)
    if p.op.startswith("v_dot"):
        if pv & (c.src | c.dst):
            same_c = False
            if c.op == p.op:
                if p.op.startswith("v_dot2c"):
                    ab = regs_of(c.ops[1]) | regs_of(c.ops[2])
                else:
                    ab = regs_of(c.ops[1]) | regs_of(c.ops[2])
                same_c = not (pv & ab)
            if not same_c: n = max(n, 3)
    if p.kind == "mfma":
        ps_ = mfma_passes(p.op)
        tab = {4: (8, 6, 3), 8: (12, 10, 7)}[ps_]
        if c.kind in ("valu", "trans"):
            if pv & (c.src | c.dst): n = max(n, tab[0])
            if p.srcC & c.dst: n = max(n, tab[2])
        if c.kind in ("vmem", "ds"):
            if pv & (c.src | c.dst): n = max(n, tab[0])
        if c.kind == "mfma":
            ab = c.src - c.srcC if not (c.srcC & (regs_of(c.ops[1]) | regs_of(c.ops[2]))) else c.src
            ab = regs_of(c.ops[1]) | regs_of(c.ops[2])
            if pv & ab: n = max(n, tab[0])
            if pv & c.srcC:
                if not (c.srcC == pv and mfma_passes(c.op) == ps_): n = max(n, tab[1])
    if p.kind == "salu" and ("m0", 0) in p.dst and c.kind == "vmem" and c.lds: n = max(n, 1)
    if p.kind == "vmem" and "store" in p.op and ("x3" in p.op or "x4" in p.op):
        data = regs_of(p.ops[0]) if p.op.startswith("buffer_") else regs_of(p.ops[1])
        if data & c.dst: n = max(n, 2 if c.kind in ("valu", "trans", "mfma") else 1)
    return n

def hazard_fix(lines):
    out = []
    hist = []
    pos = 0
    nins = 0
    for ln in lines:
        t = ln.split(";")[0].strip()
        if not t:
            out.append(ln); continue
        i = Ins2(ln)
        if i.kind == "label":
            out.append(ln)
            continue
        if i.kind == "nop":
            out.append(ln); pos += i.nop; continue
        req = 0
        for (p, ppos) in hist:
            n = need(p, i)
            if n:
                gap = pos - ppos - 1
                if gap < n: req = max(req, n - gap)
        while req > 0:
            k = min(req, 16)
            out.append("    s_nop %d" % (k - 1)); pos += k; req -= k; nins += 1
        out.append(ln)
        hist.append((i, pos)); pos += 1
        if len(hist) > 24: hist.pop(0)
    return out, nins

class Asm:
    def __init__(self):
        self.lines = []
    def raw(self, t): self.lines.append(t)
    def label(self, l): self.lines.append(l + ":")
    def c(self, t): self.lines.append("    ; " + t)
    def __getattr__(self, op):
        if op.startswith("__"): raise AttributeError(op)
        def f(*args, mod=""):
            self.lines.append("    " + op + " " + ", ".join(str(a) for a in args) + ((" " + mod) if mod else ""))
        return f
```

```python
from dsl import *
import math

SQH = math.sqrt(0.5)

class C:
    def __init__(self, base):
        assert base % 2 == 0
        self.base = base
    @property
    def re(self): return v(self.base)
    @property
    def im(self): return v(self.base + 1)
    @property
    def p(self): return vr(self.base, 2)

def padd(a, d, x, y): a.v_pk_add_f32(d.p, x.p, y.p)
def psub(a, d, x, y): a.v_pk_add_f32(d.p, x.p, y.p, mod="neg_lo:[0,1] neg_hi:[0,1]")
def padd_i(a, d, x, y, sg):
    a.v_pk_add_f32(d.p, y.p, x.p, mod="op_sel:[1,0] op_sel_hi:[0,1] " + ("neg_lo:[1,0]" if sg > 0 else "neg_hi:[1,0]"))
def pfma_h(a, d, x, y, sh, sg):
    a.v_pk_fma_f32(d.p, y.p, sh, x.p, mod=("" if sg > 0 else "neg_lo:[1,0,0] neg_hi:[1,0,0]"))
def pfma_ih(a, d, x, y, sh, sg):
    a.v_pk_fma_f32(d.p, y.p, sh, x.p, mod="op_sel:[1,0,0] op_sel_hi:[0,1,1] " + ("neg_lo:[1,0,0]" if sg > 0 else "neg_hi:[1,0,0]"))

def bf(a, x, y, t):
    psub(a, t, x, y); padd(a, x, x, y)
    return x, t, y
def bf_i(a, x, y, t, sg):
    padd_i(a, t, x, y, -sg); padd_i(a, x, x, y, sg)
    return x, t, y

def dft8(a, X, T, sh, sg):
    T = list(T); x = list(X); A = [None] * 8
    for j in range(4):
        t = T.pop(); A[j], A[j + 4], fr = bf(a, x[j], x[j + 4], t); T.append(fr)
    padd_i(a, A[5], A[5], A[5], sg)
    padd_i(a, A[7], A[7], A[7], sg)
    out = [None] * 8
    t = T.pop(); c0, c1, fr = bf(a, A[0], A[2], t); T.append(fr)
    t = T.pop(); c2, d, fr = bf(a, A[1], A[3], t); T.append(fr)
    t = T.pop(); e0, e1, fr = bf_i(a, A[4], A[6], t, sg); T.append(fr)
    t = T.pop(); c2u, du, fr = bf_i(a, A[5], A[7], t, sg); T.append(fr)
    t = T.pop(); out[0], out[4], fr = bf(a, c0, c2, t); T.append(fr)
    t = T.pop(); out[2], out[6], fr = bf_i(a, c1, d, t, sg); T.append(fr)
    t = T.pop(); pfma_h(a, t, e0, c2u, sh, -1); pfma_h(a, e0, e0, c2u, sh, 1); out[1], out[5] = e0, t; T.append(c2u)
    t = T.pop(); pfma_ih(a, t, e1, du, sh, -sg); pfma_ih(a, e1, e1, du, sh, sg); out[3], out[7] = e1, t; T.append(du)
    return out, T

def cmul(a, x, tw, t, conj=False):
    a.v_pk_mul_f32(t.p, x.p, tw, mod="op_sel:[0,0] op_sel_hi:[1,0]")
    a.v_pk_fma_f32(x.p, x.p, tw, t.p, mod="op_sel:[1,1,0] op_sel_hi:[0,1,1] " + ("neg_hi:[1,0,0]" if conj else "neg_lo:[1,0,0]"))

def twiddle_setup(a, lane, tw1, tw2, t0, t1, t2):
    assert tw1 % 2 == 0 and tw2 % 2 == 0
    a.v_lshrrev_b32(t0, 3, lane)
    a.v_cvt_f32_u32(t1, t0)
    for k0 in range(1, 8):
        a.v_mul_f32(t2, flit(-k0 / 64.0), t1)
        a.v_cos_f32(v(tw1 + 2 * (k0 - 1)), t2)
        a.v_sin_f32(v(tw1 + 2 * (k0 - 1) + 1), t2)
    a.v_and_b32(t0, 7, lane)
    a.v_cvt_f32_u32(t0, t0)
    a.v_mul_f32(t1, flit(-1.0 / 512.0), t1)
    for k1 in range(8):
        a.v_add_f32(t2, flit(8.0 * k1), t0) if k1 else a.v_mov_b32(t2, t0)
        a.v_mul_f32(t2, t2, t1)
        a.v_cos_f32(v(tw2 + 2 * k1), t2)
        a.v_sin_f32(v(tw2 + 2 * k1 + 1), t2)

def exch_addr_setup(a, lane, w1, r1, w2, r2, t0, t1, base_sgpr=None):
    a.v_and_b32(t0, 7, lane); a.v_lshrrev_b32(t1, 3, lane)
    a.v_mul_u32_u24(w1, 72, t0); a.v_mul_u32_u24(r1, 576, t1); a.v_add_u32(w1, w1, r1)
    a.v_lshlrev_b32(w2, 3, t0); a.v_add_u32(w2, w2, r1)
    a.v_mul_u32_u24(r1, 72, t1); a.v_lshlrev_b32(t0, 3, t0); a.v_add_u32(r1, r1, t0)
    a.v_lshlrev_b32(r2, 3, lane)
    if base_sgpr is not None:
        for r in (w1, r1, w2, r2): a.v_add_u32(r, base_sgpr, r)

def fft512(a, X, T, tw1, tw2, w1, r1, w2, r2, sh, sg):
    conj = sg > 0
    out, T = dft8(a, X, T, sh, sg)
    a.ds_write_b64(w1, out[0].p)
    for k0 in range(1, 8):
        cmul(a, out[k0], vr(tw1 + 2 * (k0 - 1), 2), T[k0 & 1], conj)
        a.ds_write_b64(w1, out[k0].p, mod="offset:%d" % (8 * k0))
    for n1 in range(8):
        a.ds_read_b64(out[n1].p, r1, mod="offset:%d" % (576 * n1))
    a.s_waitcnt("lgkmcnt(0)")
    out, T = dft8(a, out, T, sh, sg)
    for k1 in range(8):
        cmul(a, out[k1], vr(tw2 + 2 * k1, 2), T[k1 & 1], conj)
        a.ds_write_b64(w2, out[k1].p, mod="offset:%d" % (64 * k1))
    for n0 in range(8):
        a.ds_read_b64(out[n0].p, r2, mod="offset:%d" % (576 * n0))
    a.s_waitcnt("lgkmcnt(0)")
    out, T = dft8(a, out, T, sh, sg)
    return out, T
```

```python
from common import *
from fftpk import *
import math

SCR = 0
PK = 24832
K0_LDS = PK + 4 * 8192
K0_VGPR = 148

S_X, S_A, S_B, S_WS = 4, 8, 12, 16
S_WAVE, S_W4 = 20, 21
S_SQH = 22
L = v(1)

def k0(a):
    st = OPT["st0"]
    a.label("k0_kernel")
    a.s_cmp_ge_u32(s(2), 256)
    a.s_cbranch_scc1("K0_END")
    a.s_load_dwordx8(sr(32, 8), sr(0, 2), 0)
    a.s_load_dwordx4(sr(40, 4), sr(0, 2), 32)
    a.s_load_dwordx2(sr(44, 2), sr(0, 2), 48)
    a.s_load_dwordx2(sr(46, 2), sr(0, 2), 72)
    a.v_and_b32(L, 63, v(0))
    a.v_lshrrev_b32(v(2), 6, v(0))
    a.v_readfirstlane_b32(s(S_WAVE), v(2))
    a.s_and_b32(s(S_W4), s(S_WAVE), 3)
    a.s_cmp_ge_u32(s(S_WAVE), 4)
    a.s_cbranch_scc1("K0_PACK")
    vm = VM(a)
    XD = 8
    for i in range(16): a.v_mov_b32(v(XD + i), 0)
    S_RA = 24
    a.s_lshl_b32(s(S_RA), s(2), 3); a.s_lshl_b32(s(25), s(S_W4), 1); a.s_add_u32(s(S_RA), s(S_RA), s(25))
    a.s_lshl_b32(s(25), s(S_RA), 10)
    a.s_mul_i32(s(26), s(S_RA), 514)
    a.v_lshlrev_b32(v(2), 1, L)
    a.v_mov_b32(v(3), 0)
    a.s_mov_b32(s(S_SQH), flit(SQH)); a.s_mov_b32(s(S_SQH + 1), flit(SQH))
    a.s_waitcnt("lgkmcnt(0)")
    srd(a, S_X, 32, 2048 * 1024)
    for j in range(8):
        for row in range(2):
            a.buffer_load_short_d16_hi(v(XD + 2 * j + row), v(2), sr(S_X, 4), s(25), mod="offen offset:%d" % (row * 1024 + j * 128)); vm.issue("x")
    srd(a, S_A, 34, 2048 * 514); srd(a, S_B, 36, 2048 * 514); srd(a, S_WS, 46, WS_BYTES)
    WL = 64
    for row in range(2):
        for arr in range(2):
            for j in range(5):
                a.buffer_load_ushort(v(WL + row * 10 + arr * 5 + j), v(2) if j < 4 else v(3), sr(S_A if arr == 0 else S_B, 4), s(26),
                                     mod="offen offset:%d" % (row * 514 + j * 128)); vm.issue("w")
    TW1, TW2 = 32, 46
    twiddle_setup(a, L, TW1, TW2, v(4), v(5), v(6))
    S_SCR = 27
    a.s_mul_i32(s(S_SCR), s(S_W4), 4608)
    W1, R1, W2, R2 = v(84), v(85), v(86), v(87)
    exch_addr_setup(a, L, W1, R1, W2, R2, v(4), v(5), base_sgpr=s(S_SCR))
    VMR, VGX, VGW, VGR, VGO = 88, 89, 90, 91, 92
    a.v_sub_u32(v(VMR), 320, L); a.v_lshlrev_b32(v(VMR), 3, v(VMR)); a.v_add_u32(v(VMR), s(S_SCR), v(VMR))
    a.v_mul_u32_u24(v(4), 96, L)
    a.s_lshl_b32(s(28), s(S_W4), 4); a.v_add_u32(v(VGX), s(28), v(4))
    a.s_lshl_b32(s(28), s(S_W4), 3); a.s_add_u32(s(28), s(28), 64); a.v_add_u32(v(VGW), s(28), v(4))
    a.s_mul_i32(s(28), s(S_W4), 6144); a.v_lshlrev_b32(v(VGR), 4, L); a.v_add_u32(v(VGR), s(28), v(VGR))
    S_SB = 29
    a.s_mul_i32(s(S_SB), s(2), 96)
    a.s_mul_i32(s(28), s(S_W4), 64 * 24576); a.s_add_u32(s(28), s(28), s(S_SB))
    if WS_C: a.s_add_u32(s(28), s(28), WS_C)
    for i in range(6):
        a.v_add_u32(v(4), 64 * i, L)
        a.v_mul_u32_u24(v(5), "0x2aab", v(4)); a.v_lshrrev_b32(v(5), 16, v(5))
        a.v_mul_u32_u24(v(6), 6, v(5)); a.v_sub_u32(v(6), v(4), v(6))
        a.v_mul_u32_u24(v(5), 24576, v(5)); a.v_lshl_add_u32(v(5), v(6), 4, v(5))
        a.v_add_u32(v(VGO + i), s(28), v(5))
    VXN = 98
    S_XN = 30
    a.v_lshlrev_b32(v(VXN), 8, L)
    a.s_lshr_b32(s(S_XN), s(S_RA), 4); a.s_lshl_b32(s(S_XN), s(S_XN), 14)
    a.s_and_b32(s(28), s(S_RA), 15); a.s_lshl_b32(s(28), s(28), 4)
    a.s_add_u32(s(S_XN), s(S_XN), s(28)); a.s_add_u32(s(S_XN), s(S_XN), WS_XN)
    X = [C(XD + 2 * j) for j in range(8)]
    T = [C(24), C(26), C(28), C(30)]
    vm.wait("x")
    S0, S1, Q0, Q1 = T
    padd(a, S0, X[0], X[1]); padd(a, S1, X[2], X[3])
    a.v_pk_mul_f32(Q0.p, X[0].p, X[0].p); a.v_pk_mul_f32(Q1.p, X[1].p, X[1].p)
    padd(a, S0, S0, X[4]); padd(a, S1, S1, X[5])
    for j in range(2, 8): q = (Q0, Q1)[j & 1]; a.v_pk_fma_f32(q.p, X[j].p, X[j].p, q.p)
    padd(a, S0, S0, X[6]); padd(a, S1, S1, X[7])
    padd(a, Q0, Q0, Q1); padd(a, S0, S0, S1)
    a.v_permlane32_swap_b32(Q0.re, Q0.im); a.v_permlane32_swap_b32(S0.re, S0.im)
    a.v_add_f32(Q0.re, Q0.re, Q0.im); a.v_add_f32(S0.re, S0.re, S0.im)
    a.v_permlane16_swap_b32(S0.re, Q0.re)
    r = S0.re
    a.v_add_f32(r, S0.re, Q0.re)
    for k in (8, 4, 2, 1): a.v_add_f32_dpp(r, r, r, mod="row_ror:%d row_mask:0xf bank_mask:0xf" % k)
    a.v_mul_f32(r, flit(1 / 512.), r)
    q = Q0.re
    a.v_mov_b32(q, r)
    a.v_permlane16_swap_b32(r, q)
    NM, RS = C(4), C(6)
    a.v_fma_f32(q, "-" + r, r, q)
    a.v_cvt_pk_bf16_f32(NM.re, 0, "-" + r)
    a.v_cvt_pk_bf16_f32(q, 0, q)
    a.v_mov_b32(NM.im, NM.re)
    a.v_add_f32(q, flit(1e-5), q)
    a.v_cvt_pk_bf16_f32(q, 0, q)
    a.v_permlane32_swap_b32(NM.re, NM.im)
    a.v_sqrt_f32(q, q)
    for j in range(8): padd(a, X[j], X[j], NM)
    a.v_cvt_pk_bf16_f32(q, 0, q)
    a.v_rcp_f32(RS.re, q)
    for j in range(16): a.v_cvt_pk_bf16_f32(v(XD + j), 0, v(XD + j))
    a.v_mov_b32(RS.im, RS.re)
    a.v_permlane32_swap_b32(RS.re, RS.im)
    for j in range(8): a.v_pk_mul_f32(X[j].p, X[j].p, RS.p)
    XP = 100
    for row in range(2):
        for d in range(4): a.v_cvt_pk_bf16_f32(v(XP + row * 4 + d), v(XD + 4 * d + row), v(XD + 4 * d + 2 + row))
        a.buffer_store_dwordx4(vr(XP + row * 4, 4), v(VXN), sr(S_WS, 4), s(S_XN), mod="offen offset:%d %s" % (row * 16, st)); vm.issue("s")
    for j in range(16): a.v_cvt_pk_bf16_f32(v(XD + j), 0, v(XD + j))
    out, T = fft512(a, X, T, TW1, TW2, W1, R1, W2, R2, sr(S_SQH, 2), -1)
    for j in range(4, 8): a.ds_write_b64(R2, out[j].p, mod="offset:%d" % (512 * j))
    a.ds_write_b64(R2, out[0].p, mod="offset:4096")
    MR = 128
    for j in range(4): a.ds_read_b64(vr(MR + 2 * j, 2), v(VMR), mod="offset:%d" % ((3 - j) * 512))
    WP = 136
    vm.wait("w")
    for j in range(5):
        for row in range(2):
            a.v_lshl_or_b32(v(WP + 2 * j + row), v(WL + row * 10 + 5 + j), 16, v(WL + row * 10 + j))
    Q = 108
    z = out[4]
    a.v_add_f32(v(Q + 16), z.re, z.re); a.v_mov_b32(v(Q + 17), 0); a.v_add_f32(v(Q + 18), z.im, z.im); a.v_mov_b32(v(Q + 19), 0)
    for j in range(4):
        a.s_waitcnt("lgkmcnt(%d)" % (3 - j))
        z = out[j]; m = C(MR + 2 * j)
        a.v_pk_add_f32(vr(Q + 4 * j, 2), z.p, m.p, mod="neg_hi:[0,1]")
        a.v_pk_add_f32(vr(Q + 4 * j + 2, 2), z.p, m.p, mod="op_sel:[1,1] op_sel_hi:[0,0] neg_hi:[1,0]")
    a.s_barrier()
    for j in range(4):
        a.ds_write_b128(v(VGX), vr(Q + 4 * j, 4), mod="offset:%d" % (j * 64 * 96))
        a.ds_write_b64(v(VGW), vr(WP + 2 * j, 2), mod="offset:%d" % (j * 64 * 96))
    a.s_lshl_b32(s(28), s(S_W4), 4); a.s_add_u32(s(28), s(28), s(S_SB)); a.s_add_u32(s(28), s(28), WS_C + 256 * 24576)
    a.s_lshl_b32(s(31), s(S_W4), 3); a.s_add_u32(s(31), s(31), s(S_SB)); a.s_add_u32(s(31), s(31), WS_C + 256 * 24576 + 64)
    a.s_mov_b64("exec", 1)
    a.buffer_store_dwordx4(vr(Q + 16, 4), v(3), sr(S_WS, 4), s(28), mod="offen " + st)
    a.buffer_store_dwordx2(vr(WP + 8, 2), v(3), sr(S_WS, 4), s(31), mod="offen " + st)
    a.s_mov_b64("exec", -1)
    a.s_waitcnt("lgkmcnt(0)")
    a.s_barrier()
    for k in range(6): a.ds_read_b128(vr(8 + 4 * k, 4), v(VGR), mod="offset:%d" % (k * 1024))
    for k in range(6):
        a.s_waitcnt("lgkmcnt(%d)" % (5 - k))
        a.buffer_store_dwordx4(vr(8 + 4 * k, 4), v(VGO + k), sr(S_WS, 4), 0, mod="offen " + st)
    a.s_endpgm()

    a.label("K0_PACK")
    S_U = 24
    a.s_lshl_b32(s(S_U), s(2), 2); a.s_add_u32(s(S_U), s(S_U), s(S_W4))
    S_IMG = 25
    a.s_lshl_b32(s(S_IMG), s(S_W4), 13); a.s_add_u32(s(S_IMG), s(S_IMG), PK)
    a.v_lshlrev_b32(v(4), 4, L)
    a.s_cmp_ge_u32(s(S_U), 512)
    a.s_cbranch_scc1("K0_PACKD")
    S_MAT, S_NG, S_S = 26, 27, 28
    a.s_lshr_b32(s(S_MAT), s(S_U), 8); a.s_bfe_u32(s(S_NG), s(S_U), "0x40004"); a.s_and_b32(s(S_S), s(S_U), 15)
    a.v_lshrrev_b32(v(2), 4, L); a.v_mul_u32_u24(v(2), 64 * 2752, v(2))
    a.v_and_b32(v(3), 15, L); a.v_lshl_add_u32(v(2), v(3), 4, v(2))
    a.v_lshrrev_b32(v(5), 2, L); a.v_lshlrev_b32(v(5), 8, v(5)); a.v_and_b32(v(6), 3, L); a.v_lshl_add_u32(v(5), v(6), 3, v(5))
    a.v_add_u32(v(5), s(S_IMG), v(5))
    a.s_mul_i32(s(29), s(S_S), 4 * 2752); a.s_mul_i32(s(30), s(S_NG), 192); a.s_add_u32(s(29), s(29), s(30))
    a.s_waitcnt("lgkmcnt(0)")
    srd(a, S_WS, 46, WS_BYTES)
    a.s_cmp_eq_u32(s(S_NG), 15)
    a.s_cbranch_scc1("K0_ZERO")
    a.s_cmp_eq_u32(s(S_MAT), 0)
    a.s_cselect_b32(s(S_A), s(40), s(42)); a.s_cselect_b32(s(S_A + 1), s(41), s(43))
    a.s_mov_b32(s(S_A + 2), "0x%x" % (512 * 2752)); a.s_mov_b32(s(S_A + 3), "0x00020000")
    a.s_mov_b32("exec_lo", "0x0fff0fff"); a.s_mov_b32("exec_hi", "0x0fff0fff")
    for i in range(8):
        h, g = i >> 2, i & 3
        a.s_add_u32(s(30), s(29), (g + 256 * h) * 2752)
        a.s_add_u32("m0", s(S_IMG), i * 1024)
        a.buffer_load_dwordx4(v(2), sr(S_A, 4), s(30), mod="offen lds")
    a.s_mov_b64("exec", -1)
    a.s_lshl_b32(s(30), s(S_NG), 4); a.s_add_u32(s(30), s(30), s(S_S)); a.s_mul_i32(s(30), s(30), 12288)
    a.s_mul_i32(s(31), s(S_MAT), 6144); a.s_add_u32(s(30), s(30), s(31)); a.s_add_u32(s(30), s(30), WS_WB)
    a.s_add_u32(s(31), s(30), 4096)
    a.s_waitcnt("vmcnt(0)")
    for j in range(6):
        for h in range(2):
            a.ds_read_b64_tr_b16(vr(8 + 4 * j + 2 * h, 2), v(5), mod="offset:%d" % (h * 4096 + j * 32))
    for j in range(6):
        a.s_waitcnt("lgkmcnt(%d)" % (10 - 2 * j))
        a.buffer_store_dwordx4(vr(8 + 4 * j, 4), v(4), sr(S_WS, 4), s(30 if j < 4 else 31), mod="offen offset:%d %s" % ((j & 3) * 1024, st))
    a.s_endpgm()
    a.label("K0_ZERO")
    a.s_cmp_lg_u32(s(S_U), 255)
    a.s_cbranch_scc1("K0_END")
    for i in range(4): a.v_mov_b32(v(8 + i), 0)
    a.s_mov_b32(s(30), WS_FLAG)
    for i in range(4):
        a.buffer_store_dwordx4(vr(8, 4), v(4), sr(S_WS, 4), s(30), mod="offen offset:%d" % (i * 1024))
    a.s_endpgm()
    a.label("K0_PACKD")
    S_NB, S_KS = 26, 27
    a.s_bfe_u32(s(S_NB), s(S_U), "0x30006"); a.s_and_b32(s(S_KS), s(S_U), 63)
    a.s_cmp_ge_u32(s(S_KS), 43)
    a.s_cbranch_scc1("K0_END")
    a.v_lshrrev_b32(v(2), 3, L); a.v_lshlrev_b32(v(2), 10, v(2))
    a.v_and_b32(v(3), 7, L); a.v_lshl_add_u32(v(2), v(3), 4, v(2))
    a.v_lshlrev_b32(v(5), 5, L); a.v_add_u32(v(5), s(S_IMG), v(5))
    a.s_lshl_b32(s(29), s(S_KS), 15); a.s_lshl_b32(s(30), s(S_NB), 7); a.s_add_u32(s(29), s(29), s(30))
    a.s_waitcnt("lgkmcnt(0)")
    srd(a, S_WS, 46, WS_BYTES); srd(a, S_A, 44, 1376 * 1024)
    for i in range(4):
        a.s_add_u32(s(30), s(29), i * 8192)
        a.s_add_u32("m0", s(S_IMG), i * 1024)
        a.buffer_load_dwordx4(v(2), sr(S_A, 4), s(30), mod="offen lds")
    a.s_mul_i32(s(30), s(S_NB), 43); a.s_add_u32(s(30), s(30), s(S_KS)); a.s_lshl_b32(s(30), s(30), 12); a.s_add_u32(s(30), s(30), WS_WD)
    a.s_waitcnt("vmcnt(0)")
    for nt in range(4):
        for h in range(2):
            a.ds_read_b64_tr_b16(vr(8 + 4 * nt + 2 * h, 2), v(5), mod="offset:%d" % (h * 2048 + nt * 8))
    for nt in range(4):
        a.s_waitcnt("lgkmcnt(%d)" % (6 - 2 * nt))
        a.buffer_store_dwordx4(vr(8 + 4 * nt, 4), v(4), sr(S_WS, 4), s(30), mod="offen offset:%d %s" % (nt * 1024, st))
    a.label("K0_END")
    a.s_endpgm()
```

```python
from common import *
from fftpk import *
import math

NSLOT = 6
SLOT = 12288
K1_LDS = NSLOT * SLOT
K1_VGPR = 224
K1_GRID = 497

S_WS = 4
S_WAVE = 12
S_SQH = 14
L = v(1)
EXP = ""

class Qd:
    def __init__(self, base): self.base = base; self.c = [C(base), C(base + 2)]
    @property
    def quad(self): return vr(self.base, 4)

def colfft(a, S_K):
    st = OPT["st1"]
    vm = VM(a)
    S_KB, S_ZB = 16, 20
    a.s_mul_i32(s(S_KB), s(S_K), 24576)
    if WS_C: a.s_add_u32(s(S_KB), s(S_KB), WS_C)
    for i in range(1, 4): a.s_add_u32(s(S_KB + i), s(S_KB), 6144 * i)
    a.s_lshl_b32(s(S_ZB), s(S_K), 14)
    a.s_add_u32(s(S_ZB), s(S_ZB), WS_ZT)
    for i in range(1, 4): a.s_add_u32(s(S_ZB + i), s(S_ZB), 4096 * i)
    a.v_lshrrev_b32(v(2), 2, v(0)); a.v_mul_u32_u24(v(2), 96, v(2))
    a.v_and_b32(v(3), 3, v(0)); a.v_lshl_add_u32(v(2), v(3), 4, v(2))
    a.v_lshrrev_b32(v(3), 1, L); a.v_mul_u32_u24(v(3), 96, v(3))
    a.v_and_b32(v(4), 1, L); a.v_lshl_add_u32(v(3), v(4), 4, v(3))
    a.s_lshl_b32(s(24), s(S_WAVE), 2); a.s_add_u32(s(24), s(24), 64)
    a.v_add_u32(v(3), s(24), v(3))
    a.s_waitcnt("lgkmcnt(0)")
    srd(a, S_WS, 32, WS_BYTES)
    XQ = 8
    Q = [Qd(XQ + 4 * i) for i in range(4)]
    TQ = [Qd(24), Qd(28)]
    for i in range(4):
        a.buffer_load_dwordx4(Q[i].quad, v(2), sr(S_WS, 4), s(S_KB + i), mod="offen"); vm.issue("x")
    WV = 32
    for j in range(8):
        a.buffer_load_dword(v(WV + j), v(3), sr(S_WS, 4), s(S_KB + (j >> 1)), mod="offen offset:%d" % ((j & 1) * 3072)); vm.issue("w")
    TW1, TW2, TW4 = 40, 54, 70
    twiddle_setup(a, L, TW1, TW2, v(4), v(5), v(6))
    a.v_lshlrev_b32(v(4), 1, v(0)); a.v_cvt_f32_u32(v(4), v(4)); a.v_add_f32(v(5), 1.0, v(4))
    for b in range(1, 4):
        for mi in range(2):
            a.v_mul_f32(v(6), flit(-b / 2048.0), v(4 + mi))
            a.v_cos_f32(v(TW4 + (b - 1) * 4 + mi * 2), v(6))
            a.v_sin_f32(v(TW4 + (b - 1) * 4 + mi * 2 + 1), v(6))
    S_SCR = 25
    a.s_mul_i32(s(S_SCR), s(S_WAVE), 4608)
    W1, R1, W2, R2 = v(82), v(83), v(84), v(85)
    exch_addr_setup(a, L, W1, R1, W2, R2, v(4), v(5), base_sgpr=s(S_SCR))
    VT16 = v(86)
    a.v_lshlrev_b32(VT16, 4, v(0))
    tc = [C(88), C(90)]
    sh = sr(S_SQH, 2)
    def qbf(x, y, t):
        for i in range(2): bf(a, x.c[i], y.c[i], t.c[i])
        return x, t, y
    def qbfi(x, y, t, sg):
        for i in range(2): bf_i(a, x.c[i], y.c[i], t.c[i], sg)
        return x, t, y
    vm.wait("x")
    T = list(TQ)
    t = T.pop(); t0_, t1_, fr = qbf(Q[0], Q[2], t); T.append(fr)
    t = T.pop(); t2_, t3_, fr = qbf(Q[1], Q[3], t); T.append(fr)
    Y = [None] * 4
    t = T.pop(); Y[0], Y[2], fr = qbf(t0_, t2_, t); T.append(fr)
    t = T.pop(); Y[1], Y[3], fr = qbfi(t1_, t3_, t, -1); T.append(fr)
    for b in range(4):
        if b:
            for mi in range(2): cmul(a, Y[b].c[mi], vr(TW4 + (b - 1) * 4 + mi * 2, 2), tc[mi])
        a.ds_write_b128(VT16, Y[b].quad, mod="offset:%d" % (b * 4608))
    a.s_waitcnt("lgkmcnt(0)")
    a.s_barrier()
    X = [C(8 + 2 * j) for j in range(8)]
    TT = [C(24 + 2 * j) for j in range(4)]
    for j in range(8): a.ds_read_b64(X[j].p, R2, mod="offset:%d" % (512 * j))
    vm.wait("w")
    WU = 92
    sc = 2.0 ** -21
    a.s_mov_b32(s(26), flit(sc)); a.s_mov_b32(s(27), flit(sc)); a.s_mov_b32(s(28), "0xffff0000")
    for j in range(8):
        a.v_lshlrev_b32(v(WU + 2 * j), 16, v(WV + j)); a.v_and_b32(v(WU + 2 * j + 1), s(28), v(WV + j))
        a.v_pk_mul_f32(vr(WU + 2 * j, 2), vr(WU + 2 * j, 2), sr(26, 2))
    a.s_waitcnt("lgkmcnt(0)")
    out, TT = fft512(a, X, TT, TW1, TW2, W1, R1, W2, R2, sh, -1)
    for j in range(8): cmul(a, out[j], vr(WU + 2 * j, 2), tc[j & 1])
    out, TT = fft512(a, out, TT, TW1, TW2, W1, R1, W2, R2, sh, +1)
    for j in range(8): a.ds_write_b64(R2, out[j].p, mod="offset:%d" % (512 * j))
    a.s_waitcnt("lgkmcnt(0)")
    a.s_barrier()
    U = [Qd(XQ + 4 * i) for i in range(4)]
    for b in range(4): a.ds_read_b128(U[b].quad, VT16, mod="offset:%d" % (b * 4608))
    for b in range(1, 4):
        a.s_waitcnt("lgkmcnt(%d)" % (3 - b))
        for mi in range(2): cmul(a, U[b].c[mi], vr(TW4 + (b - 1) * 4 + mi * 2, 2), tc[mi], conj=True)
    T = list(TQ)
    t = T.pop(); t0_, t1_, fr = qbf(U[0], U[2], t); T.append(fr)
    t = T.pop(); t2_, t3_, fr = qbf(U[1], U[3], t); T.append(fr)
    Z = [None] * 4
    t = T.pop(); Z[0], Z[2], fr = qbf(t0_, t2_, t); T.append(fr)
    t = T.pop(); Z[1], Z[3], fr = qbfi(t1_, t3_, t, +1); T.append(fr)
    for i in range(4):
        a.buffer_store_dwordx4(Z[i].quad, VT16, sr(S_WS, 4), s(S_ZB + i), mod="offen " + st)
    a.s_endpgm()

def gemm1(a, S_MB, S_NG):
    st = OPT["st1"]
    vm = VM(a)
    NA = NSLOT + 1
    S_A0, S_A1, S_BO, S_M0 = 16, 17, 18, 19
    S_MT = 20
    a.s_lshl_b32(s(S_MT), s(S_MB), 3); a.s_lshl_b32(s(21), s(S_WAVE), 1); a.s_add_u32(s(S_MT), s(S_MT), s(21))
    a.s_lshl_b32(s(S_A0), s(S_MT), 14); a.s_add_u32(s(S_A0), s(S_A0), WS_XN); a.s_add_u32(s(S_A1), s(S_A0), 16384)
    a.s_mul_i32(s(S_BO), s(S_NG), 16 * SLOT); a.s_add_u32(s(S_BO), s(S_BO), WS_WB)
    a.s_mul_i32(s(S_M0), s(S_WAVE), 3072)
    VL16, VBD, VR1 = v(2), v(3), v(4)
    a.v_lshlrev_b32(VL16, 4, L)
    a.v_add_u32(VBD, s(S_M0), VL16)
    a.v_add_u32(VR1, 3 * SLOT, VL16)
    a.s_waitcnt("lgkmcnt(0)")
    srd(a, S_WS, 32, WS_BYTES)
    AF = 8
    BF = AF + NA * 8
    ACC = BF + 48
    assert ACC + 96 <= K1_VGPR, ACC + 96
    def acc(f, mt): return vr(ACC + (f * 2 + mt) * 4, 4)
    def af(i, mt): return vr(AF + (i % NA) * 8 + mt * 4, 4)
    HF = [[0, 1, 2, 6, 7, 8], [3, 4, 5, 9, 10, 11]]
    def loads(i):
        sl = i % NSLOT
        a.s_add_u32("m0", s(S_M0), sl * SLOT)
        for mt in range(2):
            a.buffer_load_dwordx4(af(i, mt), VL16, sr(S_WS, 4), s(S_A0 + mt), mod="offen"); vm.issue("st%d" % i)
        for d in range(3):
            a.buffer_load_dwordx4(VBD, sr(S_WS, 4), s(S_BO), mod="offen offset:%d lds" % (d * 1024)); vm.issue("st%d" % i)
        a.s_add_u32(s(S_A0), s(S_A0), 1024); a.s_add_u32(s(S_A1), s(S_A1), 1024); a.s_add_u32(s(S_BO), s(S_BO), SLOT)
    def rd(i, h, q):
        sl = i % NSLOT
        off = sl * SLOT + HF[h][q] * 1024
        base = VL16
        if off >= 3 * SLOT: off -= 3 * SLOT; base = VR1
        a.ds_read_b128(vr(BF + h * 24 + q * 4, 4), base, mod="offset:%d" % off)
    def mf(i, h, q, mt):
        f = HF[h][q]
        a.v_mfma_f32_16x16x32_bf16(acc(f, mt), vr(BF + h * 24 + q * 4, 4), af(i, mt), acc(f, mt) if i else 0)
    for i in range(NSLOT): loads(i)
    vm.wait("st0")
    a.s_barrier()
    a.s_setprio(1)
    for q in range(6): rd(0, 0, q)
    for i in range(16):
        for q in range(6):
            a.s_waitcnt("lgkmcnt(%d)" % (5 - q + min(q, 6)) if False else "lgkmcnt(5)")
            mf(i, 0, q, 0)
            rd(i, 1, q)
            mf(i, 0, q, 1)
        if i < 15:
            a.s_waitcnt("vmcnt(%d) lgkmcnt(0)" % vm.count("st%d" % (i + 1)))
            a.s_barrier()
            for q in range(6):
                mf(i, 1, q, 0)
                rd(i + 1, 0, q)
                mf(i, 1, q, 1)
                if q == 0 and i + NSLOT < 16: loads(i + NSLOT)
        else:
            for q in range(6):
                a.s_waitcnt("lgkmcnt(%d)" % (5 - q))
                mf(i, 1, q, 0); mf(i, 1, q, 1)
    a.s_setprio(0)
    c0 = -2.0 * math.sqrt(2.0 / math.pi) * math.log2(math.e)
    c1 = c0 * 0.044715
    S_C1, S_ONE2 = 22, 24
    a.s_mov_b32(s(S_C1), flit(c1)); a.s_mov_b32(s(S_C1 + 1), flit(c1))
    a.s_mov_b32(s(S_ONE2), flit(1.0)); a.s_mov_b32(s(S_ONE2 + 1), flit(1.0))
    VC0 = 8
    a.v_mov_b32(v(VC0), flit(c0)); a.v_mov_b32(v(VC0 + 1), flit(c0))
    S_HB, S_KS = 26, 27
    a.s_mul_i32(s(S_KS), s(S_NG), 3)
    a.s_lshr_b32(s(S_HB), s(S_MT), 2); a.s_mul_i32(s(S_HB), s(S_HB), 43); a.s_add_u32(s(S_HB), s(S_HB), s(S_KS)); a.s_lshl_b32(s(S_HB), s(S_HB), 12)
    a.s_and_b32(s(28), s(S_MT), 3); a.s_lshl_b32(s(28), s(28), 10); a.s_add_u32(s(S_HB), s(S_HB), s(28)); a.s_add_u32(s(S_HB), s(S_HB), WS_H)
    for p in range(3):
        if p:
            a.s_cmp_ge_u32(s(S_KS), 43 - p)
            a.s_cbranch_scc1("K1_END")
            a.s_add_u32(s(S_HB), s(S_HB), 4096)
        for mt in range(2):
            O = 48 + (mt & 1) * 4
            for t in range(2):
                j = 2 * p + t
                G = ACC + (j * 2 + mt) * 4; U = ACC + ((6 + j) * 2 + mt) * 4
                T = 16 + t * 8
                for d in range(4): a.v_cvt_pk_bf16_f32(v(G + d), 0, v(G + d))
                for d in (0, 2): a.v_pk_mul_f32(vr(T + d, 2), vr(G + d, 2), vr(G + d, 2))
                for d in (0, 2): a.v_pk_fma_f32(vr(T + d, 2), vr(T + d, 2), sr(S_C1, 2), vr(VC0, 2))
                for d in (0, 2): a.v_pk_mul_f32(vr(T + d, 2), vr(T + d, 2), vr(G + d, 2))
                for d in range(4): a.v_exp_f32(v(T + d), v(T + d))
                for d in range(4): a.v_cvt_pk_bf16_f32(v(U + d), 0, v(U + d))
                for d in (0, 2): a.v_pk_add_f32(vr(T + d, 2), vr(T + d, 2), sr(S_ONE2, 2))
                for d in range(4): a.v_rcp_f32(v(T + d), v(T + d))
                for d in (0, 2): a.v_pk_mul_f32(vr(T + d, 2), vr(T + d, 2), vr(G + d, 2))
                for d in range(4): a.v_cvt_pk_bf16_f32(v(T + d), 0, v(T + d))
                for d in (0, 2): a.v_pk_mul_f32(vr(T + d, 2), vr(T + d, 2), vr(U + d, 2))
                a.v_cvt_pk_bf16_f32(v(O + 2 * t), v(T), v(T + 1)); a.v_cvt_pk_bf16_f32(v(O + 2 * t + 1), v(T + 2), v(T + 3))
            a.buffer_store_dwordx4(vr(O, 4), VL16, sr(S_WS, 4), s(S_HB), mod="offen offset:%d %s" % (mt * 1024, st))
    a.s_endpgm()

def k1(a):
    a.label("k1_kernel")
    a.s_cmp_ge_u32(s(2), K1_GRID)
    a.s_cbranch_scc1("K1_END")
    a.s_load_dwordx2(sr(32, 2), sr(0, 2), 72)
    a.v_and_b32(L, 63, v(0))
    a.v_lshrrev_b32(v(2), 6, v(0))
    a.v_readfirstlane_b32(s(S_WAVE), v(2))
    a.s_mov_b32(s(S_SQH), flit(SQH)); a.s_mov_b32(s(S_SQH + 1), flit(SQH))
    S_K, S_MB, S_NG = 29, 30, 31
    a.s_sub_u32(s(S_K), s(2), 256)
    a.s_cmp_ge_u32(s(2), 256)
    a.s_cbranch_scc1("K1_FFT")
    a.s_and_b32(s(S_MB), s(2), 1); a.s_lshl_b32(s(S_MB), s(S_MB), 3); a.s_bfe_u32(s(16), s(2), "0x30003"); a.s_add_u32(s(S_MB), s(S_MB), s(16))
    a.s_bfe_u32(s(S_NG), s(2), "0x20001"); a.s_lshl_b32(s(S_NG), s(S_NG), 2); a.s_lshr_b32(s(16), s(2), 6); a.s_add_u32(s(S_NG), s(S_NG), s(16))
    a.s_add_u32(s(S_K), s(S_MB), 241)
    a.s_cmp_eq_u32(s(S_NG), 15)
    a.s_cbranch_scc1("K1_FFT")
    gemm1(a, S_MB, S_NG)
    a.label("K1_FFT")
    a.s_nop(7)
    colfft(a, S_K)
    a.label("K1_END")
    a.s_endpgm()
```

```python
from common import *
import common
from fftpk import *
import math

RED = 0
SCR = 65536
K2_LDS = SCR + 4 * 4608
K2_VGPR = 248
D = 5

S_WS, S_X, S_O = 4, 8, 12
S_WAVE, S_W4 = 16, 17
S_SQH = 18
S_MB, S_NB = 20, 21
L = v(1)

def ifft_rows(a):
    vm = VM(a)
    S_S0 = 22
    a.s_lshl_b32(s(S_S0), s(S_MB), 6); a.s_lshl_b32(s(23), s(S_NB), 3); a.s_add_u32(s(S_S0), s(S_S0), s(23))
    a.s_lshl_b32(s(23), s(S_W4), 1); a.s_add_u32(s(S_S0), s(S_S0), s(23))
    S_ZB = 24
    a.s_lshl_b32(s(S_ZB), s(S_S0), 3); a.s_add_u32(s(S_ZB), s(S_ZB), WS_ZT)
    for j in range(1, 5): a.s_add_u32(s(S_ZB + j), s(S_ZB), j * 64 * 16384)
    S_SO, S_FO = 29, 30
    a.s_lshl_b32(s(S_SO), s(S_S0), 10); a.s_add_u32(s(S_SO), s(S_SO), WS_S)
    a.s_lshl_b32(s(S_FO), s(S_S0), 1); a.s_add_u32(s(S_FO), s(S_FO), WS_FLAG)
    a.v_lshlrev_b32(v(2), 14, L)
    a.v_mov_b32(v(3), 0)
    a.v_lshlrev_b32(v(4), 4, L)
    a.s_waitcnt("lgkmcnt(0)")
    srd(a, S_WS, 32, WS_BYTES)
    ZQ = 8
    common.stamp(a, 0)
    for j in range(4):
        a.buffer_load_dwordx4(vr(ZQ + 4 * j, 4), v(2), sr(S_WS, 4), s(S_ZB + j), mod="offen"); vm.issue("z")
    a.buffer_load_dwordx4(vr(ZQ + 16, 4), v(3), sr(S_WS, 4), s(S_ZB + 4), mod="offen"); vm.issue("z")
    TW1, TW2 = 56, 70
    twiddle_setup(a, L, TW1, TW2, v(5), v(6), v(7))
    S_SCR = 31
    a.s_mul_i32(s(S_SCR), s(S_W4), 4608); a.s_add_u32(s(S_SCR), s(S_SCR), SCR)
    W1, R1, W2, R2 = v(86), v(87), v(88), v(89)
    exch_addr_setup(a, L, W1, R1, W2, R2, v(5), v(6), base_sgpr=s(S_SCR))
    VMR = v(90)
    a.v_sub_u32(VMR, 320, L); a.v_lshlrev_b32(VMR, 3, VMR); a.v_add_u32(VMR, s(S_SCR), VMR)
    VS = v(91)
    a.v_mov_b32(VS, s(S_SCR))
    VP4, VP32 = v(92), v(93)
    a.v_lshlrev_b32(VP4, 2, L); a.v_add_u32(VP4, s(S_SCR), VP4)
    a.v_lshlrev_b32(VP32, 5, L); a.v_add_u32(VP32, s(S_SCR), VP32)
    a.v_cmp_eq_u32("vcc", 0, L)
    DX = 32
    X = [C(DX + 2 * j) for j in range(8)]
    T = [C(48 + 2 * j) for j in range(4)]
    common.stamp(a, 1)
    vm.wait("z")
    common.stamp(a, 2)
    a.v_cndmask_b32(v(ZQ + 1), v(ZQ + 1), v(3), "vcc"); a.v_cndmask_b32(v(ZQ + 3), v(ZQ + 3), v(3), "vcc")
    for j in range(4):
        A_, B_ = C(ZQ + 4 * j), C(ZQ + 4 * j + 2)
        padd_i(a, X[j], A_, B_, +1)
        a.v_pk_add_f32(T[j].p, B_.p, A_.p, mod="op_sel:[1,0] op_sel_hi:[0,1] neg_hi:[0,1]")
        a.ds_write_b64(VMR, T[j].p, mod="offset:%d" % ((3 - j) * 512))
    a.v_mov_b32(v(ZQ + 17), v(ZQ + 18))
    a.ds_write_b64(VS, vr(ZQ + 16, 2), mod="offset:2048")
    for j in range(4, 8): a.ds_read_b64(X[j].p, R2, mod="offset:%d" % (512 * j))
    a.s_waitcnt("lgkmcnt(0)")
    out, T = fft512(a, X, T, TW1, TW2, W1, R1, W2, R2, sr(S_SQH, 2), +1)
    for j in range(8):
        a.v_cvt_pk_bf16_f32(out[j].re, out[j].re, out[j].im)
        a.ds_write_b32(VP4, out[j].re, mod="offset:%d" % (256 * j))
    P = 8
    a.ds_read_b128(vr(P, 4), VP32); a.ds_read_b128(vr(P + 4, 4), VP32, mod="offset:16")
    a.s_mov_b32(s(22), "0x05040100"); a.s_mov_b32(s(23), "0x07060302")
    a.s_waitcnt("lgkmcnt(0)")
    O = 16
    for row in range(2):
        for d in range(4): a.v_perm_b32(v(O + 4 * row + d), v(P + 2 * d + 1), v(P + 2 * d), s(22 + row))
        a.buffer_store_dwordx4(vr(O + 4 * row, 4), v(4), sr(S_WS, 4), s(S_SO), mod="offen offset:%d sc1" % (row * 1024))
    a.v_mov_b32(v(5), 1)
    common.stamp(a, 3)
    a.s_waitcnt("vmcnt(0)")
    common.stamp(a, 4)
    a.s_mov_b64("exec", 1)
    a.buffer_store_dword(v(5), v(3), sr(S_WS, 4), s(S_FO), mod="offen sc1")
    for i in (5, 6, 7): common.stamp(a, i)
    common.stamp_out(a, 8, 2, S_WAVE, 32)
    a.s_endpgm()

def gemm2(a):
    vm = VM(a)
    NS = 11
    S_HO, S_WO = 22, 23
    a.s_mul_i32(s(S_HO), s(S_MB), 43); a.s_add_u32(s(S_HO), s(S_HO), s(S_WAVE)); a.s_lshl_b32(s(S_HO), s(S_HO), 12); a.s_add_u32(s(S_HO), s(S_HO), WS_H)
    a.s_mul_i32(s(S_WO), s(S_NB), 43); a.s_add_u32(s(S_WO), s(S_WO), s(S_WAVE)); a.s_lshl_b32(s(S_WO), s(S_WO), 12); a.s_add_u32(s(S_WO), s(S_WO), WS_WD)
    if "same" in OPT.get("e2", ""):
        a.s_lshl_b32(s(S_HO), s(S_WAVE), 12); a.s_add_u32(s(S_WO), s(S_HO), WS_WD); a.s_add_u32(s(S_HO), s(S_HO), WS_H)
    VL16 = v(2)
    a.v_lshlrev_b32(VL16, 4, L)
    a.s_waitcnt("lgkmcnt(0)")
    srd(a, S_WS, 32, WS_BYTES)
    FR = 16
    ACC = FR + 32 * D
    assert ACC + 64 <= K2_VGPR
    def acc(nt, mt): return vr(ACC + (nt * 4 + mt) * 4, 4)
    def hf(i, mt): return vr(FR + (i % D) * 32 + mt * 4, 4)
    def wf(i, nt): return vr(FR + (i % D) * 32 + 16 + nt * 4, 4)
    def loads(i):
        for q in range(4):
            a.buffer_load_dwordx4(wf(i, q), VL16, sr(S_WS, 4), s(S_WO), mod="offen offset:%d" % (q * 1024)); vm.issue("st%d" % i)
            a.buffer_load_dwordx4(hf(i, q), VL16, sr(S_WS, 4), s(S_HO), mod="offen offset:%d" % (q * 1024)); vm.issue("st%d" % i)
        a.s_add_u32(s(S_HO), s(S_HO), 16384); a.s_add_u32(s(S_WO), s(S_WO), 16384)
    common.stamp(a, 0)
    for i in range(D): loads(i)
    common.stamp(a, 1)
    srd(a, S_X, 34, 2048 * 1024); srd(a, S_O, 36, 2048 * 1024)
    S_RO, S_SO, S_FO = 24, 25, 26
    a.s_lshl_b32(s(S_RO), s(S_MB), 6); a.s_lshl_b32(s(27), s(S_WAVE), 4); a.s_add_u32(s(S_RO), s(S_RO), s(27))
    a.s_lshl_b32(s(S_FO), s(S_RO), 1); a.s_add_u32(s(S_FO), s(S_FO), WS_FLAG)
    a.s_lshl_b32(s(S_RO), s(S_RO), 10); a.s_lshl_b32(s(27), s(S_NB), 7); a.s_add_u32(s(S_RO), s(S_RO), s(27))
    a.s_add_u32(s(S_SO), s(S_RO), WS_S)
    VO, VF = v(3), v(4)
    a.v_and_b32(v(5), 15, L); a.v_lshrrev_b32(v(6), 4, L)
    a.v_lshlrev_b32(VO, 10, v(5)); a.v_lshl_add_u32(VO, v(6), 5, VO)
    a.v_and_b32(VF, 7, L); a.v_lshlrev_b32(VF, 2, VF)
    XR = 8
    for i in range(NS):
        if i == NS - 1:
            a.s_cmp_eq_u32(s(S_WAVE), 3)
            a.s_cbranch_scc1("K2_RED")
        vm.wait("st%d" % i)
        if i in (0, 5): common.stamp(a, 2 if i == 0 else 3)
        for nt in range(4):
            for mt in range(4):
                a.v_mfma_f32_16x16x32_bf16(acc(nt, mt), wf(i, nt), hf(i, mt), acc(nt, mt) if i else 0)
        if i + D < NS: loads(i + D)
        if i + D == NS:
            for d in range(2):
                a.buffer_load_dwordx4(vr(XR + 4 * d, 4), VO, sr(S_X, 4), s(S_RO), mod="offen offset:%d" % (16 * d)); vm.issue("x")
    a.label("K2_RED")
    a.s_nop(7)
    common.stamp(a, 4)
    a.s_lshl_b32(s(27), s(S_WAVE), 14); a.v_add_u32(v(5), s(27), VL16)
    a.s_lshl_b32(s(27), s(S_WAVE), 12); a.v_add_u32(v(6), s(27), VL16)
    for mt in range(4):
        for nt in range(4):
            a.ds_write_b128(v(5), acc(nt, mt), mod="offset:%d" % ((mt * 4 + nt) * 1024))
    a.s_mov_b32(s(28), 0)
    a.label("K2_POLL")
    a.buffer_load_dword(v(7), VF, sr(S_WS, 4), s(S_FO), mod="offen sc1")
    a.s_add_u32(s(28), s(28), 1)
    a.s_waitcnt("vmcnt(0)")
    a.v_cmp_ne_u32("vcc", 1, v(7))
    a.s_cmp_ge_u32(s(28), 1 if "nofft" in OPT.get("e2", "") else 200000)
    a.s_cbranch_scc1("K2_GO")
    a.s_nop(3)
    a.s_cmp_eq_u64("vcc", 0)
    a.s_cbranch_scc1("K2_GO")
    a.s_sleep(1)
    a.s_branch("K2_POLL")
    a.label("K2_GO")
    common.stamp(a, 5)
    SR = 80
    for d in range(2):
        a.buffer_load_dwordx4(vr(SR + 4 * d, 4), VO, sr(S_WS, 4), s(S_SO), mod="offen offset:%d sc1" % (16 * d))
    a.s_waitcnt("lgkmcnt(0)")
    a.s_barrier()
    common.stamp(a, 6)
    R = 16
    for nt in range(4):
        for src in range(4):
            a.ds_read_b128(vr(R + (nt * 4 + src) * 4, 4), v(6), mod="offset:%d" % (src * 16384 + nt * 1024))
    nl2e = -math.log2(math.e)
    a.s_mov_b32(s(28), flit(nl2e)); a.s_mov_b32(s(29), flit(nl2e)); a.s_mov_b32(s(30), flit(1.0)); a.s_mov_b32(s(31), flit(1.0))
    a.s_mov_b32(s(27), "0xffff0000")
    OUT = 88
    for nt in range(4):
        a.s_waitcnt("lgkmcnt(%d)" % (12 - 4 * nt))
        b = R + nt * 16
        for d in (0, 2):
            a.v_pk_add_f32(vr(b + d, 2), vr(b + d, 2), vr(b + 4 + d, 2))
            a.v_pk_add_f32(vr(b + 8 + d, 2), vr(b + 8 + d, 2), vr(b + 12 + d, 2))
        for d in (0, 2): a.v_pk_add_f32(vr(b + d, 2), vr(b + d, 2), vr(b + 8 + d, 2))
        for d in range(4): a.v_cvt_pk_bf16_f32(v(b + d), 0, v(b + d))
        for d in (0, 2): a.v_pk_mul_f32(vr(b + 4 + d, 2), vr(b + d, 2), sr(28, 2))
        for d in range(4): a.v_exp_f32(v(b + 4 + d), v(b + 4 + d))
        for d in (0, 2): a.v_pk_add_f32(vr(b + 4 + d, 2), vr(b + 4 + d, 2), sr(30, 2))
        for d in range(4): a.v_rcp_f32(v(b + 4 + d), v(b + 4 + d))
        for d in (0, 2): a.v_pk_mul_f32(vr(b + d, 2), vr(b + d, 2), vr(b + 4 + d, 2))
        for d in range(4): a.v_cvt_pk_bf16_f32(v(b + d), 0, v(b + d))
        if nt == 0: a.s_waitcnt("vmcnt(0)")
        for d in range(2):
            a.v_lshlrev_b32(v(b + 4 + 2 * d), 16, v(SR + 2 * nt + d)); a.v_and_b32(v(b + 5 + 2 * d), s(27), v(SR + 2 * nt + d))
            a.v_lshlrev_b32(v(b + 8 + 2 * d), 16, v(XR + 2 * nt + d)); a.v_and_b32(v(b + 9 + 2 * d), s(27), v(XR + 2 * nt + d))
        for d in (0, 2): a.v_pk_mul_f32(vr(b + d, 2), vr(b + d, 2), vr(b + 4 + d, 2))
        for d in range(4): a.v_cvt_pk_bf16_f32(v(b + d), 0, v(b + d))
        for d in (0, 2): a.v_pk_add_f32(vr(b + d, 2), vr(b + d, 2), vr(b + 8 + d, 2))
        a.v_cvt_pk_bf16_f32(v(OUT + 2 * nt), v(b), v(b + 1)); a.v_cvt_pk_bf16_f32(v(OUT + 2 * nt + 1), v(b + 2), v(b + 3))
        if nt & 1:
            a.buffer_store_dwordx4(vr(OUT + 2 * nt - 2, 4), VO, sr(S_O, 4), s(S_RO), mod="offen offset:%d %s" % (16 * (nt >> 1), OPT["st2"]))
    common.stamp(a, 7)
    common.stamp_out(a, 8, 2, S_WAVE, 32)
    a.s_endpgm()

def k2(a):
    a.label("k2_kernel")
    a.s_cmp_ge_u32(s(2), 256)
    a.s_cbranch_scc1("K2_END")
    a.s_load_dwordx2(sr(32, 2), sr(0, 2), 72)
    a.s_load_dwordx2(sr(34, 2), sr(0, 2), 0)
    a.s_load_dwordx2(sr(36, 2), sr(0, 2), 56)
    a.v_and_b32(L, 63, v(0))
    a.v_lshrrev_b32(v(2), 6, v(0))
    a.v_readfirstlane_b32(s(S_WAVE), v(2))
    a.s_and_b32(s(S_W4), s(S_WAVE), 3)
    a.s_mov_b32(s(S_SQH), flit(SQH)); a.s_mov_b32(s(S_SQH + 1), flit(SQH))
    a.s_and_b32(s(S_MB), s(2), 7); a.s_lshl_b32(s(S_MB), s(S_MB), 2); a.s_bfe_u32(s(22), s(2), "0x20003"); a.s_add_u32(s(S_MB), s(S_MB), s(22))
    a.s_lshr_b32(s(S_NB), s(2), 5)
    a.s_cmp_ge_u32(s(S_WAVE), 4)
    a.s_cbranch_scc1("K2_FFT")
    gemm2(a)
    a.label("K2_FFT")
    a.s_nop(7)
    if "nofft" in OPT.get("e2", ""): a.s_endpgm()
    ifft_rows(a)
    a.label("K2_END")
    a.s_endpgm()
```

```python
import sys
from dsl import *
import common

def desc(name, vgpr, sgpr=96):
    acc = (vgpr + 3) // 4 * 4
    return f""".amdhsa_kernel {name}
  .amdhsa_next_free_vgpr {vgpr}
  .amdhsa_next_free_sgpr {sgpr}
  .amdhsa_accum_offset {acc}
  .amdhsa_group_segment_fixed_size 0
  .amdhsa_kernarg_size 80
  .amdhsa_user_sgpr_count 2
  .amdhsa_user_sgpr_kernarg_segment_ptr 1
  .amdhsa_system_sgpr_workgroup_id_x 1
.end_amdhsa_kernel
"""

def build(kernels):
    head = ["; fused LN + GFNet spectral filter + GEGLU MLP gate (3 launches), generated by my own generator scripts"]
    for (name, fn, grid, block, lds, vg) in kernels:
        head.append(f"; @launch kernel={name} grid=({grid},1,1) block=({block},1,1) lds={lds}")
    out = head + ['.amdgcn_target "amdgcn-amd-amdhsa--gfx950"', ".text"]
    for (name, fn, grid, block, lds, vg) in kernels:
        a = Asm()
        fn(a)
        lines, n = hazard_fix([x for l in a.lines for x in l.split('\n')])
        print(name, "lines", len(lines), "nops inserted", n, file=sys.stderr)
        out += [f".globl {name}", ".p2align 8", f".type {name},@function"] + lines
    out += ['.section .rodata,"a"']
    for (name, fn, grid, block, lds, vg) in kernels:
        out += [".p2align 6", desc(name, vg)]
    return "\n".join(out) + "\n"

if __name__ == "__main__":
    dst = sys.argv[1] if len(sys.argv) > 1 else "test.s"
    for o in sys.argv[2:]:
        k, val = o.split("=")
        if k == "stamps": common.STAMPS = True
        common.OPT[k] = val.replace("+", " ")
    import k0 as K0, k1 as K1, k2 as K2
    ks = [("k0_kernel", K0.k0, 256, 512, K0.K0_LDS, K0.K0_VGPR),
          ("k1_kernel", K1.k1, K1.K1_GRID, 256, K1.K1_LDS, K1.K1_VGPR),
          ("k2_kernel", K2.k2, 256, 512, K2.K2_LDS, K2.K2_VGPR)]
    open(dst, "w").write(build(ks))
    import runner
    runner.build(dst)
    print("assembled", dst, file=sys.stderr)
```

```python
from common import *
import common
from fftpk import *
import math

NSLOT = 6
SLOT = 12288
K1_LDS = NSLOT * SLOT
K1_VGPR = 224
K1_GRID = 497

S_WS = 4
S_WAVE = 12
S_SQH = 14
L = v(1)
EXP = ""

class Qd:
    def __init__(self, base): self.base = base; self.c = [C(base), C(base + 2)]
    @property
    def quad(self): return vr(self.base, 4)

def colfft(a, S_K):
    st = OPT["st1"]
    vm = VM(a)
    S_KB, S_ZB = 16, 20
    a.s_mul_i32(s(S_KB), s(S_K), 24576)
    if WS_C: a.s_add_u32(s(S_KB), s(S_KB), WS_C)
    for i in range(1, 4): a.s_add_u32(s(S_KB + i), s(S_KB), 6144 * i)
    a.s_lshl_b32(s(S_ZB), s(S_K), 14)
    a.s_add_u32(s(S_ZB), s(S_ZB), WS_ZT)
    for i in range(1, 4): a.s_add_u32(s(S_ZB + i), s(S_ZB), 4096 * i)
    a.v_lshrrev_b32(v(2), 2, v(0)); a.v_mul_u32_u24(v(2), 96, v(2))
    a.v_and_b32(v(3), 3, v(0)); a.v_lshl_add_u32(v(2), v(3), 4, v(2))
    a.v_lshrrev_b32(v(3), 1, L); a.v_mul_u32_u24(v(3), 96, v(3))
    a.v_and_b32(v(4), 1, L); a.v_lshl_add_u32(v(3), v(4), 4, v(3))
    a.s_lshl_b32(s(24), s(S_WAVE), 2); a.s_add_u32(s(24), s(24), 64)
    a.v_add_u32(v(3), s(24), v(3))
    a.s_waitcnt("lgkmcnt(0)")
    srd(a, S_WS, 32, WS_BYTES)
    XQ = 8
    Q = [Qd(XQ + 4 * i) for i in range(4)]
    TQ = [Qd(24), Qd(28)]
    for i in range(4):
        a.buffer_load_dwordx4(Q[i].quad, v(2), sr(S_WS, 4), s(S_KB + i), mod="offen"); vm.issue("x")
    WV = 32
    for j in range(8):
        a.buffer_load_dword(v(WV + j), v(3), sr(S_WS, 4), s(S_KB + (j >> 1)), mod="offen offset:%d" % ((j & 1) * 3072)); vm.issue("w")
    TW1, TW2, TW4 = 40, 54, 70
    twiddle_setup(a, L, TW1, TW2, v(4), v(5), v(6))
    a.v_lshlrev_b32(v(4), 1, v(0)); a.v_cvt_f32_u32(v(4), v(4)); a.v_add_f32(v(5), 1.0, v(4))
    for b in range(1, 4):
        for mi in range(2):
            a.v_mul_f32(v(6), flit(-b / 2048.0), v(4 + mi))
            a.v_cos_f32(v(TW4 + (b - 1) * 4 + mi * 2), v(6))
            a.v_sin_f32(v(TW4 + (b - 1) * 4 + mi * 2 + 1), v(6))
    S_SCR = 25
    a.s_mul_i32(s(S_SCR), s(S_WAVE), 4608)
    W1, R1, W2, R2 = v(82), v(83), v(84), v(85)
    exch_addr_setup(a, L, W1, R1, W2, R2, v(4), v(5), base_sgpr=s(S_SCR))
    VT16 = v(86)
    a.v_lshlrev_b32(VT16, 4, v(0))
    tc = [C(88), C(90)]
    sh = sr(S_SQH, 2)
    def qbf(x, y, t):
        for i in range(2): bf(a, x.c[i], y.c[i], t.c[i])
        return x, t, y
    def qbfi(x, y, t, sg):
        for i in range(2): bf_i(a, x.c[i], y.c[i], t.c[i], sg)
        return x, t, y
    vm.wait("x")
    T = list(TQ)
    t = T.pop(); t0_, t1_, fr = qbf(Q[0], Q[2], t); T.append(fr)
    t = T.pop(); t2_, t3_, fr = qbf(Q[1], Q[3], t); T.append(fr)
    Y = [None] * 4
    t = T.pop(); Y[0], Y[2], fr = qbf(t0_, t2_, t); T.append(fr)
    t = T.pop(); Y[1], Y[3], fr = qbfi(t1_, t3_, t, -1); T.append(fr)
    for b in range(4):
        if b:
            for mi in range(2): cmul(a, Y[b].c[mi], vr(TW4 + (b - 1) * 4 + mi * 2, 2), tc[mi])
        a.ds_write_b128(VT16, Y[b].quad, mod="offset:%d" % (b * 4608))
    a.s_waitcnt("lgkmcnt(0)")
    a.s_barrier()
    X = [C(8 + 2 * j) for j in range(8)]
    TT = [C(24 + 2 * j) for j in range(4)]
    for j in range(8): a.ds_read_b64(X[j].p, R2, mod="offset:%d" % (512 * j))
    vm.wait("w")
    WU = 92
    sc = 2.0 ** -21
    a.s_mov_b32(s(26), flit(sc)); a.s_mov_b32(s(27), flit(sc)); a.s_mov_b32(s(28), "0xffff0000")
    for j in range(8):
        a.v_lshlrev_b32(v(WU + 2 * j), 16, v(WV + j)); a.v_and_b32(v(WU + 2 * j + 1), s(28), v(WV + j))
        a.v_pk_mul_f32(vr(WU + 2 * j, 2), vr(WU + 2 * j, 2), sr(26, 2))
    a.s_waitcnt("lgkmcnt(0)")
    out, TT = fft512(a, X, TT, TW1, TW2, W1, R1, W2, R2, sh, -1)
    for j in range(8): cmul(a, out[j], vr(WU + 2 * j, 2), tc[j & 1])
    out, TT = fft512(a, out, TT, TW1, TW2, W1, R1, W2, R2, sh, +1)
    for j in range(8): a.ds_write_b64(R2, out[j].p, mod="offset:%d" % (512 * j))
    a.s_waitcnt("lgkmcnt(0)")
    a.s_barrier()
    U = [Qd(XQ + 4 * i) for i in range(4)]
    for b in range(4): a.ds_read_b128(U[b].quad, VT16, mod="offset:%d" % (b * 4608))
    for b in range(1, 4):
        a.s_waitcnt("lgkmcnt(%d)" % (3 - b))
        for mi in range(2): cmul(a, U[b].c[mi], vr(TW4 + (b - 1) * 4 + mi * 2, 2), tc[mi], conj=True)
    T = list(TQ)
    t = T.pop(); t0_, t1_, fr = qbf(U[0], U[2], t); T.append(fr)
    t = T.pop(); t2_, t3_, fr = qbf(U[1], U[3], t); T.append(fr)
    Z = [None] * 4
    t = T.pop(); Z[0], Z[2], fr = qbf(t0_, t2_, t); T.append(fr)
    t = T.pop(); Z[1], Z[3], fr = qbfi(t1_, t3_, t, +1); T.append(fr)
    for i in range(4):
        a.buffer_store_dwordx4(Z[i].quad, VT16, sr(S_WS, 4), s(S_ZB + i), mod="offen " + st)
    a.s_endpgm()

def gemm1(a, S_MB, S_NG):
    st = OPT["st1"]
    vm = VM(a)
    NA = NSLOT + 1
    S_A0, S_A1, S_BO, S_M0 = 16, 17, 18, 19
    S_MT = 20
    a.s_lshl_b32(s(S_MT), s(S_MB), 3); a.s_lshl_b32(s(21), s(S_WAVE), 1); a.s_add_u32(s(S_MT), s(S_MT), s(21))
    a.s_lshl_b32(s(S_A0), s(S_MT), 14); a.s_add_u32(s(S_A0), s(S_A0), WS_XN); a.s_add_u32(s(S_A1), s(S_A0), 16384)
    a.s_mul_i32(s(S_BO), s(S_NG), 16 * SLOT); a.s_add_u32(s(S_BO), s(S_BO), WS_WB)
    a.s_mul_i32(s(S_M0), s(S_WAVE), 3072)
    VL16, VBD, VR1 = v(2), v(3), v(4)
    a.v_lshlrev_b32(VL16, 4, L)
    a.v_add_u32(VBD, s(S_M0), VL16)
    a.v_add_u32(VR1, 3 * SLOT, VL16)
    a.s_waitcnt("lgkmcnt(0)")
    srd(a, S_WS, 32, WS_BYTES)
    AF = 8
    BF = AF + NA * 8
    ACC = BF + 48
    assert ACC + 96 <= K1_VGPR, ACC + 96
    def acc(f, mt): return vr(ACC + (f * 2 + mt) * 4, 4)
    def af(i, mt): return vr(AF + (i % NA) * 8 + mt * 4, 4)
    HF = [[0, 1, 2, 6, 7, 8], [3, 4, 5, 9, 10, 11]]
    def loads(i):
        sl = i % NSLOT
        a.s_add_u32("m0", s(S_M0), sl * SLOT)
        for mt in range(2):
            a.buffer_load_dwordx4(af(i, mt), VL16, sr(S_WS, 4), s(S_A0 + mt), mod="offen"); vm.issue("st%d" % i)
        for d in range(3):
            a.buffer_load_dwordx4(VBD, sr(S_WS, 4), s(S_BO), mod="offen offset:%d lds" % (d * 1024)); vm.issue("st%d" % i)
        a.s_add_u32(s(S_A0), s(S_A0), 1024); a.s_add_u32(s(S_A1), s(S_A1), 1024); a.s_add_u32(s(S_BO), s(S_BO), SLOT)
    def rd(i, h, q):
        sl = i % NSLOT
        off = sl * SLOT + HF[h][q] * 1024
        base = VL16
        if off >= 3 * SLOT: off -= 3 * SLOT; base = VR1
        a.ds_read_b128(vr(BF + h * 24 + q * 4, 4), base, mod="offset:%d" % off)
    def mf(i, h, q, mt):
        f = HF[h][q]
        a.v_mfma_f32_16x16x32_bf16(acc(f, mt), vr(BF + h * 24 + q * 4, 4), af(i, mt), acc(f, mt) if i else 0)
    common.stamp(a, 0)
    for i in range(NSLOT): loads(i)
    common.stamp(a, 1)
    vm.wait("st0")
    a.s_barrier()
    common.stamp(a, 2)
    a.s_setprio(1)
    for q in range(6): rd(0, 0, q)
    for i in range(16):
        if i in (2, 6, 10, 14): common.stamp(a, 3 + i // 4)
        for q in range(6):
            a.s_waitcnt("lgkmcnt(%d)" % (5 - q + min(q, 6)) if False else "lgkmcnt(5)")
            mf(i, 0, q, 0)
            rd(i, 1, q)
            mf(i, 0, q, 1)
        if i < 15:
            a.s_waitcnt("vmcnt(%d) lgkmcnt(0)" % vm.count("st%d" % (i + 1)))
            a.s_barrier()
            for q in range(6):
                mf(i, 1, q, 0)
                rd(i + 1, 0, q)
                mf(i, 1, q, 1)
                if q == 0 and i + NSLOT < 16: loads(i + NSLOT)
        else:
            for q in range(6):
                a.s_waitcnt("lgkmcnt(%d)" % (5 - q))
                mf(i, 1, q, 0); mf(i, 1, q, 1)
    a.s_setprio(0)
    common.stamp(a, 7)
    c0 = -2.0 * math.sqrt(2.0 / math.pi) * math.log2(math.e)
    c1 = c0 * 0.044715
    S_C1, S_ONE2 = 22, 24
    a.s_mov_b32(s(S_C1), flit(c1)); a.s_mov_b32(s(S_C1 + 1), flit(c1))
    a.s_mov_b32(s(S_ONE2), flit(1.0)); a.s_mov_b32(s(S_ONE2 + 1), flit(1.0))
    VC0 = 8
    a.v_mov_b32(v(VC0), flit(c0)); a.v_mov_b32(v(VC0 + 1), flit(c0))
    S_HB, S_KS = 26, 27
    a.s_mul_i32(s(S_KS), s(S_NG), 3)
    a.s_lshr_b32(s(S_HB), s(S_MT), 2); a.s_mul_i32(s(S_HB), s(S_HB), 43); a.s_add_u32(s(S_HB), s(S_HB), s(S_KS)); a.s_lshl_b32(s(S_HB), s(S_HB), 12)
    a.s_and_b32(s(28), s(S_MT), 3); a.s_lshl_b32(s(28), s(28), 10); a.s_add_u32(s(S_HB), s(S_HB), s(28)); a.s_add_u32(s(S_HB), s(S_HB), WS_H)
    for p in range(3):
        if p:
            a.s_cmp_ge_u32(s(S_KS), 43 - p)
            a.s_cbranch_scc1("K1_END")
            a.s_add_u32(s(S_HB), s(S_HB), 4096)
        for mt in range(2):
            O = 48 + (mt & 1) * 4
            for t in range(2):
                j = 2 * p + t
                G = ACC + (j * 2 + mt) * 4; U = ACC + ((6 + j) * 2 + mt) * 4
                T = 16 + t * 8
                for d in range(4): a.v_cvt_pk_bf16_f32(v(G + d), 0, v(G + d))
                for d in (0, 2): a.v_pk_mul_f32(vr(T + d, 2), vr(G + d, 2), vr(G + d, 2))
                for d in (0, 2): a.v_pk_fma_f32(vr(T + d, 2), vr(T + d, 2), sr(S_C1, 2), vr(VC0, 2))
                for d in (0, 2): a.v_pk_mul_f32(vr(T + d, 2), vr(T + d, 2), vr(G + d, 2))
                for d in range(4): a.v_exp_f32(v(T + d), v(T + d))
                for d in range(4): a.v_cvt_pk_bf16_f32(v(U + d), 0, v(U + d))
                for d in (0, 2): a.v_pk_add_f32(vr(T + d, 2), vr(T + d, 2), sr(S_ONE2, 2))
                for d in range(4): a.v_rcp_f32(v(T + d), v(T + d))
                for d in (0, 2): a.v_pk_mul_f32(vr(T + d, 2), vr(T + d, 2), vr(G + d, 2))
                for d in range(4): a.v_cvt_pk_bf16_f32(v(T + d), 0, v(T + d))
                for d in (0, 2): a.v_pk_mul_f32(vr(T + d, 2), vr(T + d, 2), vr(U + d, 2))
                a.v_cvt_pk_bf16_f32(v(O + 2 * t), v(T), v(T + 1)); a.v_cvt_pk_bf16_f32(v(O + 2 * t + 1), v(T + 2), v(T + 3))
            a.buffer_store_dwordx4(vr(O, 4), VL16, sr(S_WS, 4), s(S_HB), mod="offen offset:%d %s" % (mt * 1024, st))
    common.stamp(a, 8)
    common.stamp_out(a, 9, 1, S_WAVE, 32)
    a.s_endpgm()

def k1(a):
    a.label("k1_kernel")
    a.s_cmp_ge_u32(s(2), K1_GRID)
    a.s_cbranch_scc1("K1_END")
    a.s_load_dwordx2(sr(32, 2), sr(0, 2), 72)
    a.v_and_b32(L, 63, v(0))
    a.v_lshrrev_b32(v(2), 6, v(0))
    a.v_readfirstlane_b32(s(S_WAVE), v(2))
    a.s_mov_b32(s(S_SQH), flit(SQH)); a.s_mov_b32(s(S_SQH + 1), flit(SQH))
    S_K, S_MB, S_NG = 29, 30, 31
    a.s_sub_u32(s(S_K), s(2), 256)
    a.s_cmp_ge_u32(s(2), 256)
    a.s_cbranch_scc1("K1_FFT")
    a.s_and_b32(s(S_MB), s(2), 1); a.s_lshl_b32(s(S_MB), s(S_MB), 3); a.s_bfe_u32(s(16), s(2), "0x30003"); a.s_add_u32(s(S_MB), s(S_MB), s(16))
    a.s_bfe_u32(s(S_NG), s(2), "0x20001"); a.s_lshl_b32(s(S_NG), s(S_NG), 2); a.s_lshr_b32(s(16), s(2), 6); a.s_add_u32(s(S_NG), s(S_NG), s(16))
    a.s_add_u32(s(S_K), s(S_MB), 241)
    a.s_cmp_eq_u32(s(S_NG), 15)
    a.s_cbranch_scc1("K1_FFT")
    if "nogemm" in OPT.get("e1", ""): a.s_endpgm()
    gemm1(a, S_MB, S_NG)
    a.label("K1_FFT")
    a.s_nop(7)
    if "nofft" in OPT.get("e1", ""): a.s_endpgm()
    colfft(a, S_K)
    a.label("K1_END")
    a.s_endpgm()
```

```python
from common import *
import common
from fftpk import *
import math

D = int(OPT.get('d2', 4))
WRING = D * 4096
ZI = 4 * WRING
SCR = ZI + 16640
K2_LDS = SCR + 4 * 4608
K2_VGPR = 208

S_WS, S_X, S_O, S_WD = 4, 8, 12, 8
S_WAVE, S_W4 = 16, 17
S_SQH = 18
S_MB, S_NB = 20, 21
L = v(1)

def ifft_rows(a):
    vm = VM(a)
    S_R0, S_S0 = 22, 23
    a.s_lshl_b32(s(S_R0), s(S_MB), 6); a.s_lshl_b32(s(24), s(S_NB), 3); a.s_add_u32(s(S_R0), s(S_R0), s(24))
    a.s_lshl_b32(s(24), s(S_W4), 1); a.s_add_u32(s(S_S0), s(S_R0), s(24))
    S_ZB, S_M0 = 24, 25
    a.s_lshl_b32(s(S_ZB), s(S_R0), 3); a.s_lshl_b32(s(26), s(S_W4), 18); a.s_add_u32(s(S_ZB), s(S_ZB), s(26)); a.s_add_u32(s(S_ZB), s(S_ZB), WS_ZT)
    a.s_lshl_b32(s(S_M0), s(S_W4), 10); a.s_add_u32(s(S_M0), s(S_M0), ZI)
    a.v_lshrrev_b32(v(2), 2, L); a.v_lshlrev_b32(v(2), 14, v(2))
    a.v_lshrrev_b32(v(3), 4, L); a.v_xor_b32(v(3), v(3), L); a.v_and_b32(v(3), 3, v(3)); a.v_lshl_add_u32(v(2), v(3), 4, v(2))
    a.s_waitcnt("lgkmcnt(0)")
    srd(a, S_WS, 32, WS_BYTES)
    common.stamp(a, 0)
    for i in range(4):
        a.s_add_u32("m0", s(S_M0), 4096 * i)
        a.s_add_u32(s(26), s(S_ZB), (4 * i) << 18)
        a.buffer_load_dwordx4(v(2), sr(S_WS, 4), s(26), mod="offen lds"); vm.issue("z")
    a.s_lshl_b32(s(26), s(S_R0), 3); a.s_add_u32(s(26), s(26), WS_ZT + (256 << 14))
    a.s_mov_b32("m0", ZI + 16384)
    a.s_mov_b64("exec", 15)
    a.buffer_load_dwordx4(v(2), sr(S_WS, 4), s(26), mod="offen lds"); vm.issue("z")
    a.s_mov_b64("exec", -1)
    a.s_barrier()
    if OPT.get("pf"):
        srd(a, S_WD, 38, 1376 * 1024)
        a.s_lshr_b32(s(26), s(2), 3); a.s_lshl_b32(s(27), s(S_W4), 5); a.s_add_u32(s(26), s(26), s(27)); a.s_lshl_b32(s(26), s(26), 13)
        a.v_lshlrev_b32(v(5), 7, L); a.v_add_u32(v(5), s(26), v(5))
        a.s_mov_b32(s(27), 4 << 18)
        a.buffer_load_dword(v(132), v(5), sr(S_WD, 4), 0, mod="offen"); vm.issue("pf")
        a.s_and_b32(s(26), s(2), 7); a.s_mul_i32(s(26), s(26), 4 * 43 * 4096); a.s_add_u32(s(26), s(26), WS_H)
        a.v_min_u32(v(6), 4 * 43 * 4096 - 128, v(5))
        a.buffer_load_dword(v(133), v(6), sr(S_WS, 4), s(26), mod="offen"); vm.issue("pf")
        a.v_add_u32(v(5), s(27), v(5))
        a.buffer_load_dword(v(134), v(5), sr(S_WD, 4), 0, mod="offen"); vm.issue("pf")
    srd(a, S_X, 34, 2048 * 1024); srd(a, S_O, 36, 2048 * 1024)
    S_SO, S_FO = 29, 30
    a.s_lshl_b32(s(S_SO), s(S_S0), 10); a.s_add_u32(s(S_SO), s(S_SO), WS_S)
    a.s_lshl_b32(s(S_FO), s(S_S0), 1); a.s_add_u32(s(S_FO), s(S_FO), WS_FLAG)
    a.v_mov_b32(v(3), 0)
    a.v_lshlrev_b32(v(4), 4, L)
    TW1, TW2 = 56, 70
    twiddle_setup(a, L, TW1, TW2, v(5), v(6), v(7))
    S_SCR = 31
    a.s_mul_i32(s(S_SCR), s(S_W4), 4608); a.s_add_u32(s(S_SCR), s(S_SCR), SCR)
    W1, R1, W2, R2 = v(86), v(87), v(88), v(89)
    exch_addr_setup(a, L, W1, R1, W2, R2, v(5), v(6), base_sgpr=s(S_SCR))
    VZD, VZM = v(90), v(91)
    a.v_lshrrev_b32(v(5), 2, L); a.v_xor_b32(v(5), s(S_W4), v(5)); a.v_and_b32(v(5), 3, v(5)); a.v_lshlrev_b32(v(5), 4, v(5))
    a.v_lshl_add_u32(VZD, L, 6, v(5)); a.v_add_u32(VZD, ZI, VZD)
    a.v_sub_u32(v(6), 64, L)
    a.v_lshrrev_b32(v(5), 2, v(6)); a.v_xor_b32(v(5), s(S_W4), v(5)); a.v_and_b32(v(5), 3, v(5)); a.v_lshlrev_b32(v(5), 4, v(5))
    a.v_lshl_add_u32(VZM, v(6), 6, v(5)); a.v_add_u32(VZM, ZI, VZM)
    VP4, VP32 = v(92), v(93)
    a.v_lshlrev_b32(VP4, 2, L); a.v_add_u32(VP4, s(S_SCR), VP4)
    a.v_lshlrev_b32(VP32, 5, L); a.v_add_u32(VP32, s(S_SCR), VP32)
    S_RO, S_SI, S_FI = 24, 25, 26
    a.s_lshl_b32(s(S_RO), s(S_MB), 6); a.s_lshl_b32(s(27), s(S_W4), 4); a.s_add_u32(s(S_RO), s(S_RO), s(27))
    a.s_lshl_b32(s(S_FI), s(S_RO), 1); a.s_add_u32(s(S_FI), s(S_FI), WS_FLAG)
    a.s_lshl_b32(s(S_RO), s(S_RO), 10); a.s_lshl_b32(s(27), s(S_NB), 7); a.s_add_u32(s(S_RO), s(S_RO), s(27))
    a.s_add_u32(s(S_SI), s(S_RO), WS_S)
    VO, VF, VRD = v(94), v(95), v(96)
    a.v_and_b32(v(5), 15, L); a.v_lshrrev_b32(v(6), 4, L)
    a.v_lshlrev_b32(VO, 10, v(5)); a.v_lshl_add_u32(VO, v(6), 5, VO)
    a.v_and_b32(VF, 7, L); a.v_lshlrev_b32(VF, 2, VF)
    a.s_lshl_b32(s(27), s(S_W4), 12); a.v_add_u32(VRD, s(27), v(4)); a.v_add_u32(v(97), 65536, VRD)
    a.v_cmp_eq_u32("vcc", 0, L)
    ZQ = 100
    DX = 32
    X = [C(DX + 2 * j) for j in range(8)]
    T = [C(48 + 2 * j) for j in range(4)]
    common.stamp(a, 1)
    vm.wait("z")
    a.s_barrier()
    common.stamp(a, 2)
    for j in range(4): a.ds_read_b128(vr(ZQ + 4 * j, 4), VZD, mod="offset:%d" % (4096 * j))
    for j in range(4, 8): a.ds_read_b128(vr(ZQ + 4 * j, 4), VZM, mod="offset:%d" % (4096 * (7 - j)))
    XR = 8
    for d in range(2):
        a.buffer_load_dwordx4(vr(XR + 4 * d, 4), VO, sr(S_X, 4), s(S_RO), mod="offen offset:%d" % (16 * d)); vm.issue("x")
    for j in range(8):
        a.s_waitcnt("lgkmcnt(%d)" % (7 - j))
        A_, B_ = C(ZQ + 4 * j), C(ZQ + 4 * j + 2)
        if j in (0, 4):
            a.v_cndmask_b32(A_.im, A_.im, v(3), "vcc"); a.v_cndmask_b32(B_.im, B_.im, v(3), "vcc")
        if j < 4: padd_i(a, X[j], A_, B_, +1)
        else: a.v_pk_add_f32(X[j].p, B_.p, A_.p, mod="op_sel:[1,0] op_sel_hi:[0,1] neg_hi:[0,1]")
    out, T = fft512(a, X, T, TW1, TW2, W1, R1, W2, R2, sr(S_SQH, 2), +1)
    for j in range(8):
        a.v_cvt_pk_bf16_f32(out[j].re, out[j].re, out[j].im)
        a.ds_write_b32(VP4, out[j].re, mod="offset:%d" % (256 * j))
    P = 16
    a.ds_read_b128(vr(P, 4), VP32); a.ds_read_b128(vr(P + 4, 4), VP32, mod="offset:16")
    a.s_mov_b32(s(22), "0x05040100"); a.s_mov_b32(s(23), "0x07060302")
    a.s_waitcnt("lgkmcnt(0)")
    O = 24
    for row in range(2):
        for d in range(4): a.v_perm_b32(v(O + 4 * row + d), v(P + 2 * d + 1), v(P + 2 * d), s(22 + row))
        a.buffer_store_dwordx4(vr(O + 4 * row, 4), v(4), sr(S_WS, 4), s(S_SO), mod="offen offset:%d sc1" % (row * 1024))
    a.v_mov_b32(v(5), 1)
    common.stamp(a, 3)
    a.s_waitcnt("vmcnt(0)")
    common.stamp(a, 4)
    a.s_mov_b64("exec", 1)
    a.buffer_store_dword(v(5), v(3), sr(S_WS, 4), s(S_FO), mod="offen sc1")
    a.s_mov_b64("exec", -1)
    a.s_setprio(0)
    a.s_barrier()
    a.s_mov_b32(s(28), 0)
    a.label("K2_POLL")
    a.buffer_load_dword(v(7), VF, sr(S_WS, 4), s(S_FI), mod="offen sc1")
    a.s_add_u32(s(28), s(28), 1)
    a.s_waitcnt("vmcnt(0)")
    a.v_cmp_ne_u32("vcc", 1, v(7))
    a.s_cmp_ge_u32(s(28), 200000)
    a.s_cbranch_scc1("K2_GO")
    a.s_nop(3)
    a.s_cmp_eq_u64("vcc", 0)
    a.s_cbranch_scc1("K2_GO")
    a.s_sleep(8)
    a.s_branch("K2_POLL")
    a.label("K2_GO")
    common.stamp(a, 5)
    SR = 16
    for d in range(2):
        a.buffer_load_dwordx4(vr(SR + 4 * d, 4), VO, sr(S_WS, 4), s(S_SI), mod="offen offset:%d sc1" % (16 * d))
    nl2e = -math.log2(math.e)
    a.s_mov_b32(s(28), flit(nl2e)); a.s_mov_b32(s(29), flit(nl2e)); a.s_mov_b32(s(30), flit(1.0)); a.s_mov_b32(s(31), flit(1.0))
    a.s_mov_b32(s(27), "0xffff0000")
    SU, XU = 100, 116
    a.s_waitcnt("vmcnt(0)")
    for d in range(8):
        a.v_lshlrev_b32(v(SU + 2 * d), 16, v(SR + d)); a.v_and_b32(v(SU + 2 * d + 1), s(27), v(SR + d))
        a.v_lshlrev_b32(v(XU + 2 * d), 16, v(XR + d)); a.v_and_b32(v(XU + 2 * d + 1), s(27), v(XR + d))
    a.s_barrier()
    common.stamp(a, 6)
    R = 24
    for nt in range(4):
        for src in range(4):
            off = src * WRING + nt * 1024
            a.ds_read_b128(vr(R + (nt * 4 + src) * 4, 4), VRD if off < 65536 else v(97), mod="offset:%d" % (off if off < 65536 else off - 65536))
    OUT = 8
    for nt in range(4):
        a.s_waitcnt("lgkmcnt(%d)" % (12 - 4 * nt))
        b = R + nt * 16
        for d in (0, 2):
            a.v_pk_add_f32(vr(b + d, 2), vr(b + d, 2), vr(b + 4 + d, 2))
            a.v_pk_add_f32(vr(b + 8 + d, 2), vr(b + 8 + d, 2), vr(b + 12 + d, 2))
        for d in (0, 2): a.v_pk_add_f32(vr(b + d, 2), vr(b + d, 2), vr(b + 8 + d, 2))
        for d in range(4): a.v_cvt_pk_bf16_f32(v(b + d), 0, v(b + d))
        for d in (0, 2): a.v_pk_mul_f32(vr(b + 4 + d, 2), vr(b + d, 2), sr(28, 2))
        for d in range(4): a.v_exp_f32(v(b + 4 + d), v(b + 4 + d))
        for d in (0, 2): a.v_pk_add_f32(vr(b + 4 + d, 2), vr(b + 4 + d, 2), sr(30, 2))
        for d in range(4): a.v_rcp_f32(v(b + 4 + d), v(b + 4 + d))
        for d in (0, 2): a.v_pk_mul_f32(vr(b + d, 2), vr(b + d, 2), vr(b + 4 + d, 2))
        for d in range(4): a.v_cvt_pk_bf16_f32(v(b + d), 0, v(b + d))
        for d in (0, 2): a.v_pk_mul_f32(vr(b + d, 2), vr(b + d, 2), vr(SU + 4 * nt + d, 2))
        for d in range(4): a.v_cvt_pk_bf16_f32(v(b + d), 0, v(b + d))
        for d in (0, 2): a.v_pk_add_f32(vr(b + d, 2), vr(b + d, 2), vr(XU + 4 * nt + d, 2))
        a.v_cvt_pk_bf16_f32(v(OUT + 2 * nt), v(b), v(b + 1)); a.v_cvt_pk_bf16_f32(v(OUT + 2 * nt + 1), v(b + 2), v(b + 3))
        if nt & 1:
            a.buffer_store_dwordx4(vr(OUT + 2 * nt - 2, 4), VO, sr(S_O, 4), s(S_RO), mod="offen offset:%d %s" % (16 * (nt >> 1), OPT["st2"]))
    common.stamp(a, 7)
    common.stamp_out(a, 8, 2, S_WAVE, 32)
    a.s_endpgm()

def gemm2(a):
    S_HO, S_WO, S_M0 = 22, 23, 24
    a.s_mul_i32(s(S_HO), s(S_MB), 43); a.s_add_u32(s(S_HO), s(S_HO), s(S_WAVE)); a.s_lshl_b32(s(S_HO), s(S_HO), 12); a.s_add_u32(s(S_HO), s(S_HO), WS_H)
    a.s_lshl_b32(s(S_WO), s(S_WAVE), 15); a.s_lshl_b32(s(25), s(S_NB), 7); a.s_add_u32(s(S_WO), s(S_WO), s(25))
    a.s_mul_i32(s(S_M0), s(S_WAVE), WRING)
    VL16, VWD = v(2), v(3)
    VT = [v(4), v(5)]
    a.v_lshlrev_b32(VL16, 4, L)
    a.v_lshrrev_b32(v(6), 3, L); a.v_lshlrev_b32(VWD, 10, v(6))
    a.v_lshrrev_b32(v(6), 4, L); a.v_and_b32(v(6), 1, v(6)); a.v_xor_b32(v(6), v(6), L); a.v_and_b32(v(6), 7, v(6))
    a.v_lshl_add_u32(VWD, v(6), 4, VWD)
    a.v_lshlrev_b32(VT[0], 5, L); a.v_add_u32(VT[0], s(S_M0), VT[0])
    a.v_lshrrev_b32(v(6), 3, L); a.v_and_b32(v(6), 1, v(6)); a.v_lshlrev_b32(v(6), 4, v(6))
    a.v_xor_b32(v(7), 16, v(6))
    a.v_add_u32(VT[1], VT[0], v(7)); a.v_add_u32(VT[0], VT[0], v(6))
    a.v_add_u32(v(6), s(S_M0), VL16)
    a.s_waitcnt("lgkmcnt(0)")
    srd(a, S_WS, 32, WS_BYTES); srd(a, S_WD, 38, 1376 * 1024)
    PKD = "wdpk" in OPT.get("e2", "")
    if PKD:
        srd(a, S_WD, 32, WS_BYTES)
        a.s_mul_i32(s(S_WO), s(S_NB), 43); a.s_add_u32(s(S_WO), s(S_WO), s(S_WAVE)); a.s_lshl_b32(s(S_WO), s(S_WO), 12); a.s_add_u32(s(S_WO), s(S_WO), WS_WD)
        a.v_mov_b32(VWD, VL16)
    HF = 8
    WF = HF + 16 * D
    ACC = WF + 32
    assert ACC + 64 <= K2_VGPR
    def acc(nt, mt): return vr(ACC + (nt * 4 + mt) * 4, 4)
    def hf(i, mt): return vr(HF + (i % D) * 16 + mt * 4, 4)
    def wf(i, nt): return vr(WF + (i & 1) * 16 + nt * 4, 4)
    a.s_barrier()
    a.s_cmp_eq_u32(s(S_WAVE), 3)
    a.s_cbranch_scc1("K2_G10")
    for NS in (11, 10):
        if NS == 10: a.label("K2_G10")
        vm = VM(a)
        def loads(i):
            for q in range(4):
                a.s_add_u32("m0", s(S_M0), (i % D) * 4096 + q * 1024)
                a.s_add_u32(s(25), s(S_WO), q * (1024 if PKD else 8192))
                a.buffer_load_dwordx4(VWD, sr(S_WD, 4), s(25), mod="offen lds"); vm.issue("st%d" % i)
                a.buffer_load_dwordx4(hf(i, q), VL16, sr(S_WS, 4), s(S_HO), mod="offen offset:%d" % (q * 1024)); vm.issue("st%d" % i)
            a.s_add_u32(s(S_HO), s(S_HO), 16384); a.s_add_u32(s(S_WO), s(S_WO), 16384 if PKD else 131072)
        def trr(i):
            for nt in range(4):
                for h in range(2):
                    a.ds_read_b64_tr_b16(vr(WF + (i & 1) * 16 + nt * 4 + 2 * h, 2), VT[nt >> 1], mod="offset:%d" % ((i % D) * 4096 + h * 2048 + (nt & 1) * 8))
        common.stamp(a, 0)
        for i in range(D):
            loads(i)
            if i == int(OPT.get("b1", 1)): a.s_barrier()
        common.stamp(a, 1)
        for i in range(NS):
            if i == 5: common.stamp(a, 3)
            if i == 11 - int(OPT.get("bp", 3)): a.s_barrier()
            vm.wait("st%d" % i)
            if i == 0: common.stamp(a, 2)
            trr(i)
            for nt in range(4):
                a.s_waitcnt("lgkmcnt(%d)" % (6 - 2 * nt))
                for mt in range(4):
                    a.v_mfma_f32_16x16x32_bf16(acc(nt, mt), wf(i, nt), hf(i, mt), acc(nt, mt) if i else 0)
            if i + D < NS: loads(i + D)
        if NS == 11: a.s_branch("K2_RED")
    a.label("K2_RED")
    a.s_nop(7)
    common.stamp(a, 4)
    for mt in range(4):
        for nt in range(4):
            a.ds_write_b128(v(6), acc(nt, mt), mod="offset:%d" % ((mt * 4 + nt) * 1024))
    a.s_waitcnt("lgkmcnt(0)")
    a.s_barrier()
    for i in (5, 6, 7): common.stamp(a, i)
    common.stamp_out(a, 8, 2, S_WAVE, 32)
    a.s_endpgm()

def k2(a):
    a.label("k2_kernel")
    a.s_cmp_ge_u32(s(2), 256)
    a.s_cbranch_scc1("K2_END")
    a.s_load_dwordx2(sr(32, 2), sr(0, 2), 72)
    a.s_load_dwordx2(sr(34, 2), sr(0, 2), 0)
    a.s_load_dwordx2(sr(36, 2), sr(0, 2), 56)
    a.s_load_dwordx2(sr(38, 2), sr(0, 2), 48)
    a.v_and_b32(L, 63, v(0))
    a.v_lshrrev_b32(v(2), 6, v(0))
    a.v_readfirstlane_b32(s(S_WAVE), v(2))
    a.s_and_b32(s(S_W4), s(S_WAVE), 3)
    a.s_mov_b32(s(S_SQH), flit(SQH)); a.s_mov_b32(s(S_SQH + 1), flit(SQH))
    a.s_and_b32(s(S_MB), s(2), 7); a.s_lshl_b32(s(S_MB), s(S_MB), 2); a.s_bfe_u32(s(22), s(2), "0x20003"); a.s_add_u32(s(S_MB), s(S_MB), s(22))
    a.s_lshr_b32(s(S_NB), s(2), 5)
    a.s_cmp_ge_u32(s(S_WAVE), 4)
    a.s_cbranch_scc1("K2_FFT")
    gemm2(a)
    a.label("K2_FFT")
    a.s_nop(7)
    a.s_setprio(2)
    ifft_rows(a)
    a.label("K2_END")
    a.s_endpgm()
```

```python
from common import *
import common
from fftpk import *
import math

NSLOT = 6
SLOT = 12288
KA_LDS = NSLOT * SLOT
KA_VGPR = 224
KA_GRID = 512

S_WS, S_X, S_A, S_B, S_DBG = 4, 8, 12, 16, 20
S_WAVE = 24
S_SQH = 26
K_X, K_WR, K_WI, K_G, K_U, K_D, K_DBG, K_WS = 32, 34, 36, 40, 42, 44, 46, 48
L = v(1)
TW1, TW2, TW4 = 32, 46, 148
W1, R1, W2, R2 = v(84), v(85), v(86), v(87)
S_SCR = 28
SPIN = 100000
FPL = int(OPT.get("fpl", 4))
WS_FX = WS_FLAG + 0x10000
WS_FC = WS_FLAG + 0x20000
WS_FW = WS_FLAG + 0x30000
WS_WT = 0x480000
FBYTES = 256 // FPL * 128
def flag_off(a, dst, src):
    sh = FPL.bit_length() - 1
    a.s_lshr_b32(s(dst), s(src), sh); a.s_lshl_b32(s(dst), s(dst), 7)
    if FPL > 1:
        a.s_and_b32(s(dst + 1), s(src), FPL - 1); a.s_lshl_b32(s(dst + 1), s(dst + 1), 2); a.s_add_u32(s(dst), s(dst), s(dst + 1))
def spin(a, name, body, cnt, sl):
    a.s_mov_b32(s(cnt), 0)
    a.label(name + "_L")
    body()
    a.s_add_u32(s(cnt), s(cnt), 1)
    a.s_cmp_ge_u32(s(cnt), SPIN)
    a.s_cbranch_scc1(name + "_X")
    a.s_nop(3)
    a.s_cmp_eq_u64("vcc", 0)
    a.s_cbranch_scc1(name + "_X")
    a.s_sleep(sl)
    a.s_branch(name + "_L")
    a.label(name + "_X")
def wait_zeroed(a, name, cnt, vz, vt):
    def body():
        a.buffer_load_dword(vt, vz, sr(S_DBG, 4), 0, mod="offen sc1")
        a.s_waitcnt("vmcnt(0)")
        a.v_cmp_eq_u32("vcc", 0, vt)
    spin(a, name, body, cnt, 2)

class Qd:
    def __init__(self, base): self.base = base; self.c = [C(base), C(base + 2)]
    @property
    def quad(self): return vr(self.base, 4)

def f_setup(a):
    twiddle_setup(a, L, TW1, TW2, v(4), v(5), v(6))
    a.s_mul_i32(s(S_SCR), s(S_WAVE), 4608)
    exch_addr_setup(a, L, W1, R1, W2, R2, v(4), v(5), base_sgpr=s(S_SCR))

def p2_setup(a):
    a.v_lshlrev_b32(v(4), 1, v(0)); a.v_cvt_f32_u32(v(4), v(4)); a.v_add_f32(v(5), 1.0, v(4))
    for b in range(1, 4):
        for mi in range(2):
            a.v_mul_f32(v(6), flit(-b / 2048.0), v(4 + mi))
            a.v_cos_f32(v(TW4 + (b - 1) * 4 + mi * 2), v(6))
            a.v_sin_f32(v(TW4 + (b - 1) * 4 + mi * 2 + 1), v(6))

def p1(a):
    vm = VM(a)
    XD = 8
    XNL, X1L = 18432, 32768
    for i in range(16): a.v_mov_b32(v(XD + i), 0)
    S_RA = 50
    a.s_lshl_b32(s(S_RA), s(2), 3); a.s_lshl_b32(s(51), s(S_WAVE), 1); a.s_add_u32(s(S_RA), s(S_RA), s(51))
    a.s_lshl_b32(s(51), s(S_RA), 10)
    a.v_lshlrev_b32(v(2), 1, L)
    a.v_mov_b32(v(3), 0)
    a.s_waitcnt("lgkmcnt(0)")
    srd(a, S_X, K_X, 2048 * 1024)
    common.stamp(a, 0)
    for j in range(8):
        for row in range(2):
            a.buffer_load_short_d16_hi(v(XD + 2 * j + row), v(2), sr(S_X, 4), s(51), mod="offen offset:%d" % (row * 1024 + j * 128)); vm.issue("x")
    srd(a, S_WS, K_WS, WS_BYTES); srd(a, S_DBG, K_DBG, 256)
    f_setup(a)
    VMR, VGX, VGR, VGO, VNW, VNR, VNO = 88, 89, 90, 91, 92, 94, 95
    a.v_sub_u32(v(VMR), 320, L); a.v_lshlrev_b32(v(VMR), 3, v(VMR)); a.v_add_u32(v(VMR), s(S_SCR), v(VMR))
    a.v_lshrrev_b32(v(4), 1, L); a.v_xor_b32(v(4), s(S_WAVE), v(4)); a.v_and_b32(v(4), 3, v(4)); a.v_lshlrev_b32(v(4), 4, v(4))
    a.v_lshl_add_u32(v(VGX), L, 6, v(4)); a.v_add_u32(v(VGX), X1L, v(VGX))
    a.v_lshrrev_b32(v(4), 3, L); a.v_xor_b32(v(4), v(4), L); a.v_and_b32(v(4), 3, v(4)); a.v_lshlrev_b32(v(4), 4, v(4))
    a.v_lshrrev_b32(v(5), 2, L); a.v_lshl_add_u32(v(VGR), v(5), 6, v(4))
    a.s_lshl_b32(s(53), s(S_WAVE), 12); a.s_add_u32(s(53), s(53), X1L); a.v_add_u32(v(VGR), s(53), v(VGR))
    a.v_and_b32(v(4), 3, L); a.v_lshlrev_b32(v(4), 4, v(4)); a.v_lshl_add_u32(v(VGO), v(5), 14, v(4))
    S_XO = 58
    a.s_lshl_b32(s(S_XO), s(S_WAVE), 20); a.s_lshl_b32(s(53), s(2), 6); a.s_add_u32(s(S_XO), s(S_XO), s(53))
    if WS_C: a.s_add_u32(s(S_XO), s(S_XO), WS_C)
    for i in range(1, 4): a.s_add_u32(s(S_XO + i), s(S_XO), i << 18)
    a.s_lshl_b32(s(53), s(S_WAVE), 1)
    a.v_xor_b32(v(4), s(53), L); a.v_and_b32(v(4), 7, v(4)); a.v_lshlrev_b32(v(4), 4, v(4))
    a.v_lshl_add_u32(v(VNW), L, 7, v(4)); a.v_add_u32(v(VNW), XNL, v(VNW)); a.v_xor_b32(v(VNW + 1), 16, v(VNW))
    a.v_lshrrev_b32(v(5), 3, L); a.v_xor_b32(v(4), v(5), L); a.v_and_b32(v(4), 7, v(4)); a.v_lshlrev_b32(v(4), 4, v(4))
    a.v_lshl_add_u32(v(VNR), v(5), 7, v(4)); a.s_lshl_b32(s(53), s(S_WAVE), 11); a.s_add_u32(s(53), s(53), XNL); a.v_add_u32(v(VNR), s(53), v(VNR))
    a.v_and_b32(v(4), 7, L); a.v_lshlrev_b32(v(4), 4, v(4)); a.v_lshl_add_u32(v(VNO), v(5), 8, v(4))
    S_XN = 55
    a.s_lshr_b32(s(S_XN), s(2), 1); a.s_lshl_b32(s(S_XN), s(S_XN), 14)
    a.s_and_b32(s(53), s(2), 1); a.s_lshl_b32(s(53), s(53), 7); a.s_add_u32(s(S_XN), s(S_XN), s(53))
    a.s_lshl_b32(s(53), s(S_WAVE), 12); a.s_add_u32(s(S_XN), s(S_XN), s(53)); a.s_add_u32(s(S_XN), s(S_XN), WS_XN)
    X = [C(XD + 2 * j) for j in range(8)]
    T = [C(24), C(26), C(28), C(30)]
    vm.wait("x")
    common.stamp(a, 1)
    S0, S1, Q0, Q1 = T
    padd(a, S0, X[0], X[1]); padd(a, S1, X[2], X[3])
    a.v_pk_mul_f32(Q0.p, X[0].p, X[0].p); a.v_pk_mul_f32(Q1.p, X[1].p, X[1].p)
    padd(a, S0, S0, X[4]); padd(a, S1, S1, X[5])
    for j in range(2, 8): q = (Q0, Q1)[j & 1]; a.v_pk_fma_f32(q.p, X[j].p, X[j].p, q.p)
    padd(a, S0, S0, X[6]); padd(a, S1, S1, X[7])
    padd(a, Q0, Q0, Q1); padd(a, S0, S0, S1)
    a.v_permlane32_swap_b32(Q0.re, Q0.im); a.v_permlane32_swap_b32(S0.re, S0.im)
    a.v_add_f32(Q0.re, Q0.re, Q0.im); a.v_add_f32(S0.re, S0.re, S0.im)
    a.v_permlane16_swap_b32(S0.re, Q0.re)
    r = S0.re
    a.v_add_f32(r, S0.re, Q0.re)
    for k in (8, 4, 2, 1): a.v_add_f32_dpp(r, r, r, mod="row_ror:%d row_mask:0xf bank_mask:0xf" % k)
    a.v_mul_f32(r, flit(1 / 512.), r)
    q = Q0.re
    a.v_mov_b32(q, r)
    a.v_permlane16_swap_b32(r, q)
    NM, RS = C(4), C(6)
    a.v_fma_f32(q, "-" + r, r, q)
    a.v_cvt_pk_bf16_f32(NM.re, 0, "-" + r)
    a.v_cvt_pk_bf16_f32(q, 0, q)
    a.v_mov_b32(NM.im, NM.re)
    a.v_add_f32(q, flit(1e-5), q)
    a.v_cvt_pk_bf16_f32(q, 0, q)
    a.v_permlane32_swap_b32(NM.re, NM.im)
    a.v_sqrt_f32(q, q)
    for j in range(8): padd(a, X[j], X[j], NM)
    a.v_cvt_pk_bf16_f32(q, 0, q)
    a.v_rcp_f32(RS.re, q)
    for j in range(16): a.v_cvt_pk_bf16_f32(v(XD + j), 0, v(XD + j))
    a.v_mov_b32(RS.im, RS.re)
    a.v_permlane32_swap_b32(RS.re, RS.im)
    for j in range(8): a.v_pk_mul_f32(X[j].p, X[j].p, RS.p)
    XP = 100
    for row in range(2):
        for d in range(4): a.v_cvt_pk_bf16_f32(v(XP + row * 4 + d), v(XD + 4 * d + row), v(XD + 4 * d + 2 + row))
        a.ds_write_b128(v(VNW + row), vr(XP + row * 4, 4))
    for j in range(16): a.v_cvt_pk_bf16_f32(v(XD + j), 0, v(XD + j))
    a.s_waitcnt("lgkmcnt(0)")
    a.s_barrier()
    for i in range(2): a.ds_read_b128(vr(XP + i * 4, 4), v(VNR), mod="offset:%d" % (1024 * i))
    for i in range(2):
        a.s_waitcnt("lgkmcnt(%d)" % (1 - i))
        a.buffer_store_dwordx4(vr(XP + i * 4, 4), v(VNO), sr(S_WS, 4), s(S_XN), mod="offen offset:%d sc1" % (i * 2048))
    a.buffer_load_dword(v(7), v(3), sr(S_DBG, 4), 0, mod="offen sc1")
    out, T = fft512(a, X, T, TW1, TW2, W1, R1, W2, R2, sr(S_SQH, 2), -1)
    for j in range(4, 8): a.ds_write_b64(R2, out[j].p, mod="offset:%d" % (512 * j))
    a.ds_write_b64(R2, out[0].p, mod="offset:4096")
    MR = 128
    for j in range(4): a.ds_read_b64(vr(MR + 2 * j, 2), v(VMR), mod="offset:%d" % ((3 - j) * 512))
    Q = 108
    z = out[4]
    a.v_add_f32(v(Q + 16), z.re, z.re); a.v_mov_b32(v(Q + 17), 0); a.v_add_f32(v(Q + 18), z.im, z.im); a.v_mov_b32(v(Q + 19), 0)
    for j in range(4):
        a.s_waitcnt("lgkmcnt(%d)" % (3 - j) if j == 0 else "lgkmcnt(3)")
        z = out[j]; m = C(MR + 2 * j)
        a.v_pk_add_f32(vr(Q + 4 * j, 2), z.p, m.p, mod="neg_hi:[0,1]")
        a.v_pk_add_f32(vr(Q + 4 * j + 2, 2), z.p, m.p, mod="op_sel:[1,1] op_sel_hi:[0,0] neg_hi:[1,0]")
        a.ds_write_b128(v(VGX), vr(Q + 4 * j, 4), mod="offset:%d" % (j * 4096))
    a.v_mov_b32(v(5), 1)
    flag_off(a, 56, 2)
    a.s_lshl_b32(s(53), s(S_WAVE), 4); a.s_lshl_b32(s(54), s(2), 6); a.s_add_u32(s(53), s(53), s(54)); a.s_add_u32(s(53), s(53), WS_C + (256 << 14))
    common.stamp(a, 2)
    a.s_waitcnt("vmcnt(0) lgkmcnt(0)")
    a.s_barrier()
    common.stamp(a, 3)
    for k in range(4): a.ds_read_b128(vr(8 + 4 * k, 4), v(VGR), mod="offset:%d" % (k * 1024))
    a.s_cmp_lg_u32(s(S_WAVE), 0)
    a.s_cbranch_scc1("KA_NF1")
    a.v_cmp_eq_u32("vcc", 0, v(7))
    a.s_add_u32(s(54), s(56), WS_FX)
    a.s_nop(3)
    a.s_cmp_eq_u64("vcc", 0)
    a.s_cbranch_scc1("KA_Z1_X")
    wait_zeroed(a, "KA_Z1", 57, v(3), v(6))
    a.s_mov_b64("exec", 1)
    a.buffer_store_dword(v(5), v(3), sr(S_WS, 4), s(54), mod="offen sc1")
    a.s_mov_b64("exec", -1)
    a.label("KA_NF1")
    a.s_mov_b64("exec", 1)
    a.buffer_store_dwordx4(vr(Q + 16, 4), v(3), sr(S_WS, 4), s(53), mod="offen sc1")
    a.s_mov_b64("exec", -1)
    for k in range(4):
        a.s_waitcnt("lgkmcnt(%d)" % (3 - k))
        a.buffer_store_dwordx4(vr(8 + 4 * k, 4), v(VGO), sr(S_WS, 4), s(S_XO + k), mod="offen sc1")
    p2_setup(a)
    a.v_mov_b32(v(5), 1)
    a.s_add_u32(s(54), s(56), WS_FC)
    common.stamp(a, 4)
    a.s_waitcnt("vmcnt(0)")
    a.s_barrier()
    common.stamp(a, 5)
    a.s_cmp_lg_u32(s(S_WAVE), 0)
    a.s_cbranch_scc1("KA_P2")
    a.s_mov_b64("exec", 1)
    a.buffer_store_dword(v(5), v(3), sr(S_WS, 4), s(54), mod="offen sc1")
    a.s_mov_b64("exec", -1)

def poll256(a, name, base, sl):
    a.s_mov_b32(s(59), base)
    def body():
        a.buffer_load_dwordx4(vr(8, 4), v(4), sr(S_WS, 4), s(59), mod="offen sc1")
        a.s_waitcnt("vmcnt(0)")
        a.v_and_b32(v(8), v(8), v(9)); a.v_and_b32(v(10), v(10), v(11)); a.v_and_b32(v(8), v(8), v(10))
        a.v_cmp_ne_u32("vcc", 1, v(8))
    spin(a, name, body, 58, sl)

def colfft(a, S_K):
    st = OPT["st1"]
    vm = VM(a)
    S_KB, S_ZB, S_WT = 50, 54, 60
    a.s_lshl_b32(s(S_KB), s(S_K), 14)
    a.s_add_u32(s(S_ZB), s(S_KB), WS_ZT)
    if WS_C: a.s_add_u32(s(S_KB), s(S_KB), WS_C)
    for i in range(1, 4): a.s_add_u32(s(S_KB + i), s(S_KB), 4096 * i)
    for i in range(1, 4): a.s_add_u32(s(S_ZB + i), s(S_ZB), 4096 * i)
    a.s_lshl_b32(s(S_WT), s(S_K), 13); a.s_lshl_b32(s(58), s(S_WAVE), 11); a.s_add_u32(s(S_WT), s(S_WT), s(58)); a.s_add_u32(s(S_WT), s(S_WT), WS_WT)
    VT16 = v(92)
    a.v_lshlrev_b32(VT16, 4, v(0))
    a.v_lshlrev_b32(v(3), 4, L)
    assert FPL >= 4
    q = FPL // 4
    a.v_lshrrev_b32(v(4), q.bit_length() - 1, L); a.v_lshlrev_b32(v(4), 7, v(4))
    if q > 1: a.v_and_b32(v(5), q - 1, L); a.v_lshl_add_u32(v(4), v(5), 4, v(4))
    a.s_cmp_gt_u32(s(S_WAVE), 1)
    a.s_cbranch_scc1("KA_P2GO")
    a.s_cmp_eq_u32(s(S_WAVE), 0)
    a.s_cbranch_scc1("KA_P2C")
    a.v_mov_b32(v(5), 0)
    wait_zeroed(a, "KA_Z4", 58, v(5), v(6))
    poll256(a, "KA_P2W", WS_FW, 4)
    a.s_branch("KA_P2GO")
    a.label("KA_P2C")
    poll256(a, "KA_P2P", WS_FC, int(OPT.get("sl2", 4)))
    a.label("KA_P2GO")
    a.s_barrier()
    common.stamp(a, 6)
    XQ = 8
    Q = [Qd(XQ + 4 * i) for i in range(4)]
    TQ = [Qd(24), Qd(28)]
    for i in range(4):
        a.buffer_load_dwordx4(Q[i].quad, VT16, sr(S_WS, 4), s(S_KB + i), mod="offen sc1"); vm.issue("x")
    WV = 64
    a.s_cmp_eq_u32(s(S_K), 256)
    a.s_cbranch_scc1("KA_NOW")
    for h in range(2):
        a.buffer_load_dwordx4(vr(WV + 4 * h, 4), v(3), sr(S_WS, 4), s(S_WT), mod="offen offset:%d sc1" % (h * 1024))
    a.s_waitcnt("vmcnt(2)")
    a.s_branch("KA_W2")
    a.label("KA_NOW")
    a.s_waitcnt("vmcnt(0)")
    a.label("KA_W2")
    tc = [C(88), C(90)]
    sh = sr(S_SQH, 2)
    def qbf(x, y, t):
        for i in range(2): bf(a, x.c[i], y.c[i], t.c[i])
        return x, t, y
    def qbfi(x, y, t, sg):
        for i in range(2): bf_i(a, x.c[i], y.c[i], t.c[i], sg)
        return x, t, y
    common.stamp(a, 7)
    T = list(TQ)
    t = T.pop(); t0_, t1_, fr = qbf(Q[0], Q[2], t); T.append(fr)
    t = T.pop(); t2_, t3_, fr = qbf(Q[1], Q[3], t); T.append(fr)
    Y = [None] * 4
    t = T.pop(); Y[0], Y[2], fr = qbf(t0_, t2_, t); T.append(fr)
    t = T.pop(); Y[1], Y[3], fr = qbfi(t1_, t3_, t, -1); T.append(fr)
    for b in range(4):
        if b:
            for mi in range(2): cmul(a, Y[b].c[mi], vr(TW4 + (b - 1) * 4 + mi * 2, 2), tc[mi])
        a.ds_write_b128(VT16, Y[b].quad, mod="offset:%d" % (b * 4608))
    a.s_waitcnt("lgkmcnt(0)")
    a.s_barrier()
    X = [C(8 + 2 * j) for j in range(8)]
    TT = [C(24 + 2 * j) for j in range(4)]
    for j in range(8): a.ds_read_b64(X[j].p, R2, mod="offset:%d" % (512 * j))
    a.s_waitcnt("vmcnt(0)")
    WU = 100
    sc = 2.0 ** -21
    a.s_mov_b32(s(58), flit(sc)); a.s_mov_b32(s(59), flit(sc)); a.s_mov_b32(s(60), "0xffff0000")
    for j in range(8):
        a.v_lshlrev_b32(v(WU + 2 * j), 16, v(WV + j)); a.v_and_b32(v(WU + 2 * j + 1), s(60), v(WV + j))
        a.v_pk_mul_f32(vr(WU + 2 * j, 2), vr(WU + 2 * j, 2), sr(58, 2))
    a.s_waitcnt("lgkmcnt(0)")
    out, TT = fft512(a, X, TT, TW1, TW2, W1, R1, W2, R2, sh, -1)
    for j in range(8): cmul(a, out[j], vr(WU + 2 * j, 2), tc[j & 1])
    out, TT = fft512(a, out, TT, TW1, TW2, W1, R1, W2, R2, sh, +1)
    for j in range(8): a.ds_write_b64(R2, out[j].p, mod="offset:%d" % (512 * j))
    a.s_waitcnt("lgkmcnt(0)")
    a.s_barrier()
    U = [Qd(XQ + 4 * i) for i in range(4)]
    for b in range(4): a.ds_read_b128(U[b].quad, VT16, mod="offset:%d" % (b * 4608))
    for b in range(1, 4):
        a.s_waitcnt("lgkmcnt(%d)" % (3 - b))
        for mi in range(2): cmul(a, U[b].c[mi], vr(TW4 + (b - 1) * 4 + mi * 2, 2), tc[mi], conj=True)
    T = list(TQ)
    t = T.pop(); t0_, t1_, fr = qbf(U[0], U[2], t); T.append(fr)
    t = T.pop(); t2_, t3_, fr = qbf(U[1], U[3], t); T.append(fr)
    Z = [None] * 4
    t = T.pop(); Z[0], Z[2], fr = qbf(t0_, t2_, t); T.append(fr)
    t = T.pop(); Z[1], Z[3], fr = qbfi(t1_, t3_, t, +1); T.append(fr)
    for i in range(4):
        a.buffer_store_dwordx4(Z[i].quad, VT16, sr(S_WS, 4), s(S_ZB + i), mod="offen " + st)
    common.stamp(a, 8)
    common.stamp_out(a, 9, 0, S_WAVE, K_WS)
    a.s_endpgm()

def wt_load(a, vm, WR):
    a.s_bfe_u32(s(58), s(2), "0x70001")
    a.s_lshr_b32(s(59), s(58), 5)
    a.s_bfe_u32(s(60), s(58), "0x10004"); a.s_lshl_b32(s(60), s(60), 10); a.s_add_u32(s(59), s(59), s(60))
    a.s_and_b32(s(60), s(58), 15); a.s_lshl_b32(s(60), s(60), 4); a.s_add_u32(s(59), s(59), s(60))
    a.s_mul_i32(s(59), s(59), 514)
    a.s_and_b32(s(60), s(2), 1); a.s_lshl_b32(s(60), s(60), 7); a.s_lshl_b32(s(61), s(S_WAVE), 5); a.s_add_u32(s(60), s(60), s(61))
    a.s_lshl_b32(s(61), s(60), 1); a.s_add_u32(s(59), s(59), s(61))
    a.s_lshl_b32(s(60), s(60), 13); a.s_lshl_b32(s(58), s(58), 6); a.s_add_u32(s(58), s(58), s(60)); a.s_add_u32(s(58), s(58), WS_WT)
    t0, t1 = v(WR + 8), v(WR + 9)
    a.v_and_b32(t0, 3, L); a.v_lshrrev_b32(t1, 2, L)
    a.v_mul_u32_u24(v(WR + 10), 4 * 514, t0); a.v_lshl_add_u32(v(WR + 10), t1, 1, v(WR + 10))
    a.v_lshlrev_b32(t0, 4, t0); a.v_lshl_add_u32(v(WR + 11), t1, 13, t0)
    srd(a, S_A, K_WR, 2048 * 514); srd(a, S_B, K_WI, 2048 * 514)
    for i in range(4):
        for cg in range(2):
            a.buffer_load_ushort(v(WR + 4 * cg + i), v(WR + 10), sr(S_A, 4), s(59), mod="offen offset:%d" % (32 * cg)); vm.issue("w")
            a.buffer_load_ushort(v(WR + 12 + 4 * cg + i), v(WR + 10), sr(S_B, 4), s(59), mod="offen offset:%d" % (32 * cg)); vm.issue("w")
        if i < 3: a.s_add_u32(s(59), s(59), 256 * 514)
def wt_store(a, vm, WR):
    vm.wait("w")
    for i in range(8): a.v_lshl_or_b32(v(WR + i), v(WR + 12 + i), 16, v(WR + i))
    a.s_add_u32(s(59), s(58), 16 << 13)
    for cg in range(2):
        a.buffer_store_dwordx4(vr(WR + 4 * cg, 4), v(WR + 11), sr(S_WS, 4), s(58 + cg), mod="offen sc1"); vm.issue("ws")
def wt_flag(a, name, vz, vt):
    a.v_mov_b32(vz, 0)
    wait_zeroed(a, name, 56, vz, vt)
    a.s_and_b32(s(55), s(2), 255)
    flag_off(a, 57, 55); a.s_add_u32(s(57), s(57), WS_FW)
    a.v_mov_b32(vt, 1)
    a.s_mov_b64("exec", 1)
    a.buffer_store_dword(vt, vz, sr(S_WS, 4), s(57), mod="offen sc1")
    a.s_mov_b64("exec", -1)

def gemm1(a, S_MB, S_NG):
    st = OPT["st1"]
    vm = VM(a)
    NA = NSLOT + 1
    S_A0, S_A1, S_BO, S_M0 = 50, 51, 52, 53
    S_MT = 54
    S_W = S_X
    a.s_lshl_b32(s(S_MT), s(S_MB), 3); a.s_lshl_b32(s(55), s(S_WAVE), 1); a.s_add_u32(s(S_MT), s(S_MT), s(55))
    a.s_lshl_b32(s(S_A0), s(S_MT), 14); a.s_add_u32(s(S_A0), s(S_A0), WS_XN); a.s_add_u32(s(S_A1), s(S_A0), 16384)
    a.s_mul_i32(s(S_BO), s(S_NG), 192)
    a.s_mul_i32(s(S_M0), s(S_WAVE), 3072)
    VL16 = v(2)
    VBD = [v(3), v(4), v(5)]
    VE, VOD = [v(6), v(216)], [v(7), v(217)]
    a.v_lshlrev_b32(VL16, 4, L)
    a.s_and_b32(s(55), s(S_WAVE), 1); a.s_mul_i32(s(55), s(55), 192)
    t0, t1, t2, t3 = v(8), v(9), v(10), v(11)
    for d in range(3):
        a.v_add_u32(t0, s(55), L)
        if d: a.v_add_u32(t0, 64 * d, t0)
        a.v_mul_u32_u24(t1, "0x1556", t0); a.v_lshrrev_b32(t1, 16, t1)
        a.v_mul_u32_u24(t2, 12, t1); a.v_sub_u32(t2, t0, t2)
        a.v_lshrrev_b32(t3, 1, t1); a.v_and_b32(t3, 2, t3); a.v_xor_b32(t2, t2, t3)
        a.v_bfe_u32(t0, t1, 2, 2)
        a.v_and_b32(t3, 3, t1); a.v_lshl_add_u32(t0, t3, 6, t0)
        a.v_lshrrev_b32(t3, 4, t1); a.v_lshl_add_u32(t0, t3, 8, t0)
        a.v_mul_u32_u24(t0, 2752, t0)
        a.v_lshl_add_u32(VBD[d], t2, 4, t0)
    a.v_lshrrev_b32(t0, 2, L); a.v_mul_u32_u24(t0, 192, t0); a.v_and_b32(t1, 3, L); a.v_lshl_add_u32(t0, t1, 3, t0)
    a.v_and_b32(t1, 16, L); a.v_lshlrev_b32(t1, 1, t1)
    a.v_add_u32(VE[0], t0, t1); a.v_sub_u32(VOD[0], t0, t1)
    a.v_add_u32(VE[1], 3 * SLOT, VE[0]); a.v_add_u32(VOD[1], 3 * SLOT, VOD[0])
    a.s_waitcnt("lgkmcnt(0)")
    srd(a, S_WS, K_WS, WS_BYTES); srd(a, S_DBG, K_DBG, 256)
    a.s_cmp_lt_u32(s(S_WAVE), 2)
    a.s_cselect_b32(s(S_W), s(K_G), s(K_U)); a.s_cselect_b32(s(S_W + 1), s(K_G + 1), s(K_U + 1))
    a.s_mov_b32(s(S_W + 2), "0x%x" % (512 * 2752)); a.s_mov_b32(s(S_W + 3), "0x00020000")
    AF = 8
    BF = AF + NA * 8
    ACC = BF + 48
    assert ACC + 96 <= 216, ACC + 96
    def acc(f, mt): return vr(ACC + (f * 2 + mt) * 4, 4)
    def af(i, mt): return vr(AF + (i % NA) * 8 + mt * 4, 4)
    HF = [[0, 1, 2, 6, 7, 8], [3, 4, 5, 9, 10, 11]]
    def loadA(i):
        for mt in range(2):
            a.buffer_load_dwordx4(af(i, mt), VL16, sr(S_WS, 4), s(S_A0 + mt), mod="offen sc1"); vm.issue("st%d" % i)
        a.s_add_u32(s(S_A0), s(S_A0), 1024); a.s_add_u32(s(S_A1), s(S_A1), 1024)
    def loadB(i):
        sl = i % NSLOT
        for d in range(3):
            a.s_add_u32("m0", s(S_M0), sl * SLOT + d * 1024)
            a.buffer_load_dwordx4(VBD[d], sr(S_W, 4), s(S_BO), mod="offen lds"); vm.issue("st%d" % i)
        a.s_add_u32(s(S_BO), s(S_BO), 4 * 2752)
    def rd(i, h, q):
        sl = i % NSLOT
        f = HF[h][q]
        mat, j = f // 6, f % 6
        off = sl * SLOT + mat * 6144 + j * 32
        hi = 0
        if off >= 3 * SLOT: off -= 3 * SLOT; hi = 1
        base = (VOD if j & 1 else VE)[hi]
        for hh in range(2):
            a.ds_read_b64_tr_b16(vr(BF + h * 24 + q * 4 + 2 * hh, 2), base, mod="offset:%d" % (off + hh * 3072))
    def mf(i, h, q, mt):
        f = HF[h][q]
        a.v_mfma_f32_16x16x32_bf16(acc(f, mt), vr(BF + h * 24 + q * 4, 4), af(i, mt), acc(f, mt) if i else 0)
    common.stamp(a, 0)
    WR = 120
    wt_load(a, vm, WR)
    for i in range(3): loadB(i)
    wt_store(a, vm, WR)
    for i in range(3, NSLOT): loadB(i)
    common.stamp(a, 1)
    vm.wait("ws")
    a.s_barrier()
    a.s_cmp_lg_u32(s(S_WAVE), 0)
    a.s_cbranch_scc1("KA_XGO")
    if "nof" in OPT.get("e1", ""): a.s_branch("KA_XGO")
    wt_flag(a, "KA_Z2", t0, t1)
    a.s_lshl_b32(s(55), s(S_MB), 4)
    flag_off(a, 57, 55); a.s_add_u32(s(57), s(57), WS_FX)
    a.v_and_b32(t0, 15, L)
    sh = FPL.bit_length() - 1
    if FPL < 16:
        a.v_lshrrev_b32(t1, sh, t0); a.v_and_b32(t0, FPL - 1, t0); a.v_lshlrev_b32(t0, 2, t0); a.v_lshl_add_u32(t0, t1, 7, t0)
    else:
        a.v_lshlrev_b32(t0, 2, t0)
    def body():
        a.buffer_load_dword(t1, t0, sr(S_WS, 4), s(57), mod="offen sc1")
        a.s_waitcnt("vmcnt(0)")
        a.v_cmp_ne_u32("vcc", 1, t1)
    spin(a, "KA_XP", body, 56, int(OPT.get("sl1", 4)))
    a.label("KA_XGO")
    a.s_barrier()
    common.stamp(a, 2)
    for i in range(NSLOT): loadA(i)
    vm.wait("st0")
    a.s_barrier()
    common.stamp(a, 3)
    a.s_setprio(1)
    for q in range(6): rd(0, 0, q)
    for i in range(16):
        if i in (4, 8, 12): common.stamp(a, 3 + i // 4)
        for q in range(6):
            a.s_waitcnt("lgkmcnt(10)")
            mf(i, 0, q, 0)
            rd(i, 1, q)
            mf(i, 0, q, 1)
        if i < 15:
            a.s_waitcnt("vmcnt(%d) lgkmcnt(0)" % vm.count("st%d" % (i + 1)))
            a.s_barrier()
            for q in range(6):
                mf(i, 1, q, 0)
                rd(i + 1, 0, q)
                mf(i, 1, q, 1)
                if q == 0 and i + NSLOT < 16: loadA(i + NSLOT); loadB(i + NSLOT)
        else:
            for q in range(6):
                a.s_waitcnt("lgkmcnt(%d)" % (10 - 2 * q))
                mf(i, 1, q, 0); mf(i, 1, q, 1)
    a.s_setprio(0)
    common.stamp(a, 7)
    c0 = -2.0 * math.sqrt(2.0 / math.pi) * math.log2(math.e)
    c1 = c0 * 0.044715
    S_C1, S_ONE2 = 56, 58
    a.s_mov_b32(s(S_C1), flit(c1)); a.s_mov_b32(s(S_C1 + 1), flit(c1))
    a.s_mov_b32(s(S_ONE2), flit(1.0)); a.s_mov_b32(s(S_ONE2 + 1), flit(1.0))
    VC0 = 8
    a.v_mov_b32(v(VC0), flit(c0)); a.v_mov_b32(v(VC0 + 1), flit(c0))
    S_HB, S_KS = 60, 61
    a.s_mul_i32(s(S_KS), s(S_NG), 3)
    a.s_lshr_b32(s(S_HB), s(S_MT), 2); a.s_mul_i32(s(S_HB), s(S_HB), 43); a.s_add_u32(s(S_HB), s(S_HB), s(S_KS)); a.s_lshl_b32(s(S_HB), s(S_HB), 12)
    a.s_and_b32(s(62), s(S_MT), 3); a.s_lshl_b32(s(62), s(62), 10); a.s_add_u32(s(S_HB), s(S_HB), s(62)); a.s_add_u32(s(S_HB), s(S_HB), WS_H)
    for p in range(3):
        if p:
            a.s_cmp_ge_u32(s(S_KS), 43 - p)
            a.s_cbranch_scc1("KA_GEND")
            a.s_add_u32(s(S_HB), s(S_HB), 4096)
        for mt in range(2):
            O = 48 + (mt & 1) * 4
            for t in range(2):
                j = 2 * p + t
                G = ACC + (j * 2 + mt) * 4; U = ACC + ((6 + j) * 2 + mt) * 4
                T = 16 + t * 8
                for d in range(4): a.v_cvt_pk_bf16_f32(v(G + d), 0, v(G + d))
                for d in (0, 2): a.v_pk_mul_f32(vr(T + d, 2), vr(G + d, 2), vr(G + d, 2))
                for d in (0, 2): a.v_pk_fma_f32(vr(T + d, 2), vr(T + d, 2), sr(S_C1, 2), vr(VC0, 2))
                for d in (0, 2): a.v_pk_mul_f32(vr(T + d, 2), vr(T + d, 2), vr(G + d, 2))
                for d in range(4): a.v_exp_f32(v(T + d), v(T + d))
                for d in range(4): a.v_cvt_pk_bf16_f32(v(U + d), 0, v(U + d))
                for d in (0, 2): a.v_pk_add_f32(vr(T + d, 2), vr(T + d, 2), sr(S_ONE2, 2))
                for d in range(4): a.v_rcp_f32(v(T + d), v(T + d))
                for d in (0, 2): a.v_pk_mul_f32(vr(T + d, 2), vr(T + d, 2), vr(G + d, 2))
                for d in range(4): a.v_cvt_pk_bf16_f32(v(T + d), 0, v(T + d))
                for d in (0, 2): a.v_pk_mul_f32(vr(T + d, 2), vr(T + d, 2), vr(U + d, 2))
                a.v_cvt_pk_bf16_f32(v(O + 2 * t), v(T), v(T + 1)); a.v_cvt_pk_bf16_f32(v(O + 2 * t + 1), v(T + 2), v(T + 3))
            a.buffer_store_dwordx4(vr(O, 4), VL16, sr(S_WS, 4), s(S_HB), mod="offen offset:%d %s" % (mt * 1024, st))
    a.label("KA_GEND")
    common.stamp(a, 8)
    common.stamp_out(a, 9, 0, S_WAVE, K_WS)
    a.s_endpgm()

def ka(a):
    a.label("ka_kernel")
    a.s_cmp_ge_u32(s(2), KA_GRID)
    a.s_cbranch_scc1("KA_END")
    a.s_load_dwordx8(sr(32, 8), sr(0, 2), 0)
    a.s_load_dwordx4(sr(40, 4), sr(0, 2), 32)
    a.s_load_dwordx2(sr(K_DBG, 2), sr(0, 2), 64)
    a.s_load_dwordx2(sr(K_WS, 2), sr(0, 2), 72)
    a.v_and_b32(L, 63, v(0))
    a.v_lshrrev_b32(v(2), 6, v(0))
    a.v_readfirstlane_b32(s(S_WAVE), v(2))
    a.s_mov_b32(s(S_SQH), flit(SQH)); a.s_mov_b32(s(S_SQH + 1), flit(SQH))
    S_K, S_MB, S_NG = 29, 30, 31
    a.s_cmp_ge_u32(s(2), 256)
    a.s_cbranch_scc1("KA_G")
    if "nof" in OPT.get("e1", ""): a.s_endpgm()
    a.s_setprio(int(OPT.get("fp", 2)))
    a.s_mov_b32(s(S_K), s(2))
    p1(a)
    a.label("KA_P2")
    colfft(a, S_K)
    a.label("KA_G")
    a.s_and_b32(s(S_MB), s(2), 1); a.s_lshl_b32(s(S_MB), s(S_MB), 3); a.s_bfe_u32(s(50), s(2), "0x30003"); a.s_add_u32(s(S_MB), s(S_MB), s(50))
    a.s_bfe_u32(s(S_NG), s(2), "0x20001"); a.s_lshl_b32(s(S_NG), s(S_NG), 2); a.s_bfe_u32(s(50), s(2), "0x20006"); a.s_xor_b32(s(50), s(50), 3); a.s_add_u32(s(S_NG), s(S_NG), s(50))
    a.s_cmp_eq_u32(s(S_NG), 15)
    a.s_cbranch_scc1("KA_IDLE")
    if "nog" in OPT.get("e1", ""): a.s_mov_b32(s(S_MB), 5); a.s_branch("KA_IDLE")
    gemm1(a, S_MB, S_NG)
    a.label("KA_IDLE")
    a.s_waitcnt("lgkmcnt(0)")
    srd(a, S_WS, K_WS, WS_BYTES); srd(a, S_DBG, K_DBG, 256)
    for i in range(9): common.stamp(a, i)
    a.s_cmp_lg_u32(s(S_MB), 0)
    a.s_cbranch_scc1("KA_NZ")
    for i in range(4): a.v_mov_b32(v(8 + i), 0)
    a.v_lshlrev_b32(v(4), 4, v(0))
    a.v_mov_b32(v(5), 1); a.v_mov_b32(v(3), 0)
    for base, n in ((WS_FX, FBYTES), (WS_FC, FBYTES), (WS_FW, FBYTES), (WS_FLAG, 4096)):
        for o in range(0, n, 4096):
            a.s_mov_b32(s(50), base + o)
            a.buffer_store_dwordx4(vr(8, 4), v(4), sr(S_WS, 4), s(50), mod="offen sc1")
    a.s_waitcnt("vmcnt(0)")
    a.s_barrier()
    a.s_cmp_lg_u32(s(S_WAVE), 0)
    a.s_cbranch_scc1("KA_NZ")
    a.s_mov_b64("exec", 1)
    a.buffer_store_dword(v(5), v(3), sr(S_DBG, 4), 0, mod="offen sc1")
    a.s_mov_b64("exec", -1)
    a.label("KA_NZ")
    common.stamp(a, 1)
    vm = VM(a)
    wt_load(a, vm, 120)
    wt_store(a, vm, 120)
    common.stamp(a, 2)
    a.s_waitcnt("vmcnt(0)")
    a.s_barrier()
    common.stamp(a, 3)
    a.s_cmp_lg_u32(s(S_WAVE), 0)
    a.s_cbranch_scc1("KA_NZ2")
    wt_flag(a, "KA_Z3", v(8), v(9))
    a.label("KA_NZ2")
    common.stamp(a, 4)
    a.s_cmp_eq_u32(s(S_MB), 1)
    a.s_cbranch_scc1("KA_K256")
    common.stamp_out(a, 9, 0, S_WAVE, K_WS)
    a.s_endpgm()
    a.label("KA_K256")
    if "nof" in OPT.get("e1", ""): a.s_endpgm()
    a.s_setprio(int(OPT.get("fp", 2)))
    a.s_mov_b32(s(S_K), 256)
    a.v_lshlrev_b32(v(4), 2, L); a.v_add_u32(v(4), s(S_WAVE), v(4)); a.v_mul_u32_u24(v(4), 514, v(4))
    for j in range(8):
        a.s_mov_b32(s(50), j * 256 * 514)
        a.buffer_load_ushort(v(64 + j), v(4), sr(S_A, 4), s(50), mod="offen offset:512")
        a.buffer_load_ushort(v(72 + j), v(4), sr(S_B, 4), s(50), mod="offen offset:512")
    f_setup(a)
    p2_setup(a)
    a.s_waitcnt("vmcnt(0)")
    for j in range(8): a.v_lshl_or_b32(v(64 + j), v(72 + j), 16, v(64 + j))
    a.s_branch("KA_P2")
    a.label("KA_END")
    a.s_endpgm()
```

```python
import sys
from dsl import *
import common
from gen import build
if __name__ == "__main__":
    dst = sys.argv[1] if len(sys.argv) > 1 else "test.s"
    for o in sys.argv[2:]:
        k, val = o.split("=")
        if k == "stamps": common.STAMPS = True
        common.OPT[k] = val.replace("+", " ")
    import ka as KA, k2 as K2
    ks = [("ka_kernel", KA.ka, KA.KA_GRID, 256, KA.KA_LDS, KA.KA_VGPR),
          ("k2_kernel", K2.k2, 256, 512, K2.K2_LDS, K2.K2_VGPR)]
    open(dst, "w").write(build(ks))
    import runner
    runner.build(dst)
    print("assembled", dst, file=sys.stderr)
```

```python
from common import *
import common
from fftpk import *
import math

M_LDS = 81920
M_VGPR = 256
M_GRID = 512

S_WS, S_X, S_A, S_B, S_DBG = 4, 8, 12, 16, 20
S_WAVE = 24
S_SQH = 26
S_SCR = 28
S_K, S_MB, S_NG = 29, 30, 31
K_X, K_WR, K_WI, K_BX, K_G, K_U, K_D, K_O, K_DBG, K_WS = 32, 34, 36, 38, 40, 42, 44, 46, 48, 50
L = v(1)
TW1, TW2, TW4 = 32, 46, 148
W1, R1, W2, R2 = v(84), v(85), v(86), v(87)
SPIN = 100000
WS_WT = 0x480000
SY = WS_FLAG
GO1, GO2, CX, CZ, C3, C4, SYEND = SY, SY + 1024, SY + 2048, SY + 3072, SY + 4096, SY + 6144, SY + 10240
NSTAMP = 16
def stamp(a, i):
    if not common.STAMPS: return
    a.s_memrealtime(sr(84, 2)) if OPT.get("rt") else a.s_memtime(sr(84, 2))
    a.s_waitcnt("lgkmcnt(0)")
    a.s_mov_b32(s(68 + i), s(84))
def stamp_out(a):
    if not common.STAMPS: return
    a.s_lshl_b32(s(86), s(2), 3); a.s_add_u32(s(86), s(86), s(S_WAVE)); a.s_lshl_b32(s(86), s(86), 6)
    a.s_add_u32(s(86), s(86), WS_DBG)
    a.s_mov_b64("exec", -1)
    a.v_mov_b32(v(0), s(86))
    for i in range(NSTAMP):
        a.v_mov_b32(v(2), s(68 + i))
        a.s_nop(1)
        a.global_store_dword(v(0), v(2), sr(K_WS, 2), mod="offset:%d" % (4 * i))
        a.s_nop(3)

def spin(a, name, body, cnt, sl):
    a.s_mov_b32(s(cnt), 0)
    a.label(name + "_L")
    body()
    a.s_add_u32(s(cnt), s(cnt), 1)
    a.s_cmp_ge_u32(s(cnt), SPIN)
    a.s_cbranch_scc1(name + "_X")
    a.s_nop(3)
    a.s_cmp_eq_u64("vcc", 0)
    a.s_cbranch_scc1(name + "_X")
    a.s_sleep(sl)
    a.s_branch(name + "_L")
    a.label(name + "_X")

def ensure_zeroed(a, name, vann, vz):
    a.v_cmp_eq_u32("vcc", 0, vann)
    a.s_nop(4)
    a.s_cmp_eq_u64("vcc", 0)
    a.s_cbranch_scc1(name + "_X")
    def body():
        a.buffer_load_dword(vann, vz, sr(S_DBG, 4), 0, mod="offen sc1")
        a.s_waitcnt("vmcnt(0)")
        a.v_cmp_eq_u32("vcc", 0, vann)
    spin(a, name, body, 52, 2)

def arrive(a, name, cbase, gobase, n, vt, vz, vrep):
    a.s_and_b32(s(52), s(2), 7)
    a.s_lshl_b32(s(53), s(52), 7); a.s_add_u32(s(53), s(53), cbase)
    a.s_lshl_b32(s(52), s(52), 2); a.s_add_u32(s(52), s(52), gobase)
    a.v_mov_b32(vt, 1)
    a.s_mov_b64("exec", 1)
    a.buffer_atomic_add(vt, vz, sr(S_WS, 4), s(53), mod="offen sc0 sc1")
    a.s_waitcnt("vmcnt(0)")
    a.v_readfirstlane_b32(s(53), vt)
    a.s_mov_b64("exec", 255)
    a.v_mov_b32(vt, 1)
    a.s_cmp_lg_u32(s(53), n - 1)
    a.s_cbranch_scc1(name + "_NG")
    a.buffer_store_dword(vt, vrep, sr(S_WS, 4), s(52), mod="offen sc1")
    a.label(name + "_NG")
    a.s_mov_b64("exec", -1)

def poll(a, name, soff, vaddr, vt, val, sl):
    def body():
        a.buffer_load_dword(vt, vaddr, sr(S_WS, 4), s(soff), mod="offen sc1")
        a.s_waitcnt("vmcnt(0)")
        a.v_cmp_ne_u32("vcc", val, vt)
    spin(a, name, body, 52, sl)

class Qd:
    def __init__(self, base): self.base = base; self.c = [C(base), C(base + 2)]
    @property
    def quad(self): return vr(self.base, 4)

def f_setup(a):
    twiddle_setup(a, L, TW1, TW2, v(4), v(5), v(6))
    a.s_mul_i32(s(S_SCR), s(S_WAVE), 4608)
    exch_addr_setup(a, L, W1, R1, W2, R2, v(4), v(5), base_sgpr=s(S_SCR))

def p2_setup(a):
    a.v_lshlrev_b32(v(4), 1, v(0)); a.v_cvt_f32_u32(v(4), v(4)); a.v_add_f32(v(5), 1.0, v(4))
    for b in range(1, 4):
        for mi in range(2):
            a.v_mul_f32(v(6), flit(-b / 2048.0), v(4 + mi))
            a.v_cos_f32(v(TW4 + (b - 1) * 4 + mi * 2), v(6))
            a.v_sin_f32(v(TW4 + (b - 1) * 4 + mi * 2 + 1), v(6))

VZ, VREP, VANN = v(3), v(96), v(97)

def p1(a):
    vm = VM(a)
    XD = 8
    X1L = 32768
    WR = 164
    for i in range(16): a.v_mov_b32(v(XD + i), 0)
    S_RB = 54
    a.s_and_b32(s(S_RB), s(2), 1); a.s_lshl_b32(s(S_RB), s(S_RB), 7); a.s_bfe_u32(s(52), s(2), "0x20001"); a.s_lshl_b32(s(52), s(52), 5)
    a.s_add_u32(s(S_RB), s(S_RB), s(52)); a.s_lshr_b32(s(52), s(2), 3); a.s_add_u32(s(S_RB), s(S_RB), s(52))
    a.s_lshl_b32(s(52), s(S_RB), 13); a.s_lshl_b32(s(53), s(S_WAVE), 11); a.s_add_u32(s(52), s(52), s(53))
    a.v_lshlrev_b32(v(2), 1, L)
    a.v_mov_b32(VZ, 0)
    S_WL, S_WST = 55, 56
    a.s_bfe_u32(s(58), s(2), "0x70001")
    a.s_lshr_b32(s(S_WL), s(58), 5)
    a.s_bfe_u32(s(60), s(58), "0x10004"); a.s_lshl_b32(s(60), s(60), 10); a.s_add_u32(s(S_WL), s(S_WL), s(60))
    a.s_and_b32(s(60), s(58), 15); a.s_lshl_b32(s(60), s(60), 4); a.s_add_u32(s(S_WL), s(S_WL), s(60))
    a.s_mul_i32(s(S_WL), s(S_WL), 514)
    a.s_and_b32(s(60), s(2), 1); a.s_lshl_b32(s(60), s(60), 7); a.s_lshl_b32(s(61), s(S_WAVE), 5); a.s_add_u32(s(60), s(60), s(61))
    a.s_lshl_b32(s(61), s(60), 1); a.s_add_u32(s(S_WL), s(S_WL), s(61))
    a.s_lshl_b32(s(60), s(60), 13); a.s_lshl_b32(s(58), s(58), 6); a.s_add_u32(s(S_WST), s(58), s(60)); a.s_add_u32(s(S_WST), s(S_WST), WS_WT)
    a.s_add_u32(s(S_WST + 1), s(S_WST), 16 << 13)
    t0, t1 = v(4), v(5)
    a.v_and_b32(t0, 3, L); a.v_lshrrev_b32(t1, 2, L)
    a.v_mul_u32_u24(v(WR + 16), 4 * 514, t0); a.v_lshl_add_u32(v(WR + 16), t1, 1, v(WR + 16))
    a.v_lshlrev_b32(t0, 4, t0); a.v_lshl_add_u32(v(WR + 17), t1, 13, t0)
    a.s_waitcnt("lgkmcnt(0)")
    srd(a, S_X, K_X, 2048 * 1024)
    stamp(a, 0)
    for j in range(8):
        for row in range(2):
            a.buffer_load_short_d16_hi(v(XD + 2 * j + row), v(2), sr(S_X, 4), s(52), mod="offen offset:%d" % (row * 1024 + j * 128)); vm.issue("x")
    srd(a, S_A, K_WR, 2048 * 514); srd(a, S_B, K_WI, 2048 * 514)
    for i in range(4):
        for cg in range(2):
            a.buffer_load_ushort(v(WR + 4 * cg + i), v(WR + 16), sr(S_A, 4), s(S_WL), mod="offen offset:%d" % (32 * cg)); vm.issue("w")
            a.buffer_load_ushort(v(WR + 8 + 4 * cg + i), v(WR + 16), sr(S_B, 4), s(S_WL), mod="offen offset:%d" % (32 * cg)); vm.issue("w")
        if i < 3: a.s_add_u32(s(S_WL), s(S_WL), 256 * 514)
    srd(a, S_WS, K_WS, WS_BYTES); srd(a, S_DBG, K_DBG, 256)
    f_setup(a)
    p2_setup(a)
    a.v_lshlrev_b32(VREP, 7, L)
    VMR, VGX, VGR, VGO = 88, 89, 90, 91
    a.v_sub_u32(v(VMR), 320, L); a.v_lshlrev_b32(v(VMR), 3, v(VMR)); a.v_add_u32(v(VMR), s(S_SCR), v(VMR))
    a.v_lshrrev_b32(v(4), 1, L); a.v_xor_b32(v(4), s(S_WAVE), v(4)); a.v_and_b32(v(4), 3, v(4)); a.v_lshlrev_b32(v(4), 4, v(4))
    a.v_lshl_add_u32(v(VGX), L, 6, v(4)); a.v_add_u32(v(VGX), X1L, v(VGX))
    a.v_lshrrev_b32(v(4), 3, L); a.v_xor_b32(v(4), v(4), L); a.v_and_b32(v(4), 3, v(4)); a.v_lshlrev_b32(v(4), 4, v(4))
    a.v_lshrrev_b32(v(5), 2, L); a.v_lshl_add_u32(v(VGR), v(5), 6, v(4))
    a.s_lshl_b32(s(53), s(S_WAVE), 12); a.s_add_u32(s(53), s(53), X1L); a.v_add_u32(v(VGR), s(53), v(VGR))
    a.v_and_b32(v(4), 3, L); a.v_lshlrev_b32(v(4), 4, v(4)); a.v_lshl_add_u32(v(VGO), v(5), 14, v(4))
    S_XO = 58
    a.s_lshl_b32(s(S_XO), s(S_WAVE), 20); a.s_lshl_b32(s(53), s(S_RB), 6); a.s_add_u32(s(S_XO), s(S_XO), s(53))
    for i in range(1, 4): a.s_add_u32(s(S_XO + i), s(S_XO), i << 18)
    a.s_lshl_b32(s(62), s(S_WAVE), 4); a.s_add_u32(s(62), s(62), s(53)); a.s_add_u32(s(62), s(62), 256 << 14)
    X = [C(XD + 2 * j) for j in range(8)]
    T = [C(24), C(26), C(28), C(30)]
    vm.wait("x")
    stamp(a, 1)
    S0, S1, Q0, Q1 = T
    padd(a, S0, X[0], X[1]); padd(a, S1, X[2], X[3])
    a.v_pk_mul_f32(Q0.p, X[0].p, X[0].p); a.v_pk_mul_f32(Q1.p, X[1].p, X[1].p)
    padd(a, S0, S0, X[4]); padd(a, S1, S1, X[5])
    for j in range(2, 8): q = (Q0, Q1)[j & 1]; a.v_pk_fma_f32(q.p, X[j].p, X[j].p, q.p)
    padd(a, S0, S0, X[6]); padd(a, S1, S1, X[7])
    padd(a, Q0, Q0, Q1); padd(a, S0, S0, S1)
    a.v_permlane32_swap_b32(Q0.re, Q0.im); a.v_permlane32_swap_b32(S0.re, S0.im)
    a.v_add_f32(Q0.re, Q0.re, Q0.im); a.v_add_f32(S0.re, S0.re, S0.im)
    a.v_permlane16_swap_b32(S0.re, Q0.re)
    r = S0.re
    a.v_add_f32(r, S0.re, Q0.re)
    for k in (8, 4, 2, 1): a.v_add_f32_dpp(r, r, r, mod="row_ror:%d row_mask:0xf bank_mask:0xf" % k)
    a.v_mul_f32(r, flit(1 / 512.), r)
    q = Q0.re
    a.v_mov_b32(q, r)
    a.v_permlane16_swap_b32(r, q)
    NM, RS = C(4), C(6)
    a.v_fma_f32(q, "-" + r, r, q)
    a.v_cvt_pk_bf16_f32(NM.re, 0, "-" + r)
    a.v_cvt_pk_bf16_f32(q, 0, q)
    a.v_mov_b32(NM.im, NM.re)
    a.v_add_f32(q, flit(1e-5), q)
    a.v_cvt_pk_bf16_f32(q, 0, q)
    a.v_permlane32_swap_b32(NM.re, NM.im)
    a.v_sqrt_f32(q, q)
    for j in range(8): padd(a, X[j], X[j], NM)
    a.v_cvt_pk_bf16_f32(q, 0, q)
    a.v_rcp_f32(RS.re, q)
    for j in range(16): a.v_cvt_pk_bf16_f32(v(XD + j), 0, v(XD + j))
    a.v_mov_b32(RS.im, RS.re)
    a.v_permlane32_swap_b32(RS.re, RS.im)
    for j in range(8): a.v_pk_mul_f32(X[j].p, X[j].p, RS.p)
    for j in range(16): a.v_cvt_pk_bf16_f32(v(XD + j), 0, v(XD + j))
    vm.wait("w")
    for i in range(8): a.v_lshl_or_b32(v(WR + i), v(WR + 8 + i), 16, v(WR + i))
    for cg in range(2):
        a.buffer_store_dwordx4(vr(WR + 4 * cg, 4), v(WR + 17), sr(S_WS, 4), s(S_WST + cg), mod="offen sc1")
    a.buffer_load_dword(VANN, VZ, sr(S_DBG, 4), 0, mod="offen sc1")
    out, T = fft512(a, X, T, TW1, TW2, W1, R1, W2, R2, sr(S_SQH, 2), -1)
    for j in range(4, 8): a.ds_write_b64(R2, out[j].p, mod="offset:%d" % (512 * j))
    a.ds_write_b64(R2, out[0].p, mod="offset:4096")
    MR = 128
    for j in range(4): a.ds_read_b64(vr(MR + 2 * j, 2), v(VMR), mod="offset:%d" % ((3 - j) * 512))
    Q = 108
    z = out[4]
    a.v_add_f32(v(Q + 16), z.re, z.re); a.v_mov_b32(v(Q + 17), 0); a.v_add_f32(v(Q + 18), z.im, z.im); a.v_mov_b32(v(Q + 19), 0)
    for j in range(4):
        a.s_waitcnt("lgkmcnt(3)")
        z = out[j]; m = C(MR + 2 * j)
        a.v_pk_add_f32(vr(Q + 4 * j, 2), z.p, m.p, mod="neg_hi:[0,1]")
        a.v_pk_add_f32(vr(Q + 4 * j + 2, 2), z.p, m.p, mod="op_sel:[1,1] op_sel_hi:[0,0] neg_hi:[1,0]")
        a.ds_write_b128(v(VGX), vr(Q + 4 * j, 4), mod="offset:%d" % (j * 4096))
    a.s_mov_b64("exec", 1)
    a.buffer_store_dwordx4(vr(Q + 16, 4), VZ, sr(S_WS, 4), s(62), mod="offen sc1")
    a.s_mov_b64("exec", -1)
    stamp(a, 2)
    a.s_waitcnt("lgkmcnt(0)")
    a.s_barrier()
    for k in range(4): a.ds_read_b128(vr(8 + 4 * k, 4), v(VGR), mod="offset:%d" % (k * 1024))
    for k in range(4):
        a.s_waitcnt("lgkmcnt(%d)" % (3 - k))
        a.buffer_store_dwordx4(vr(8 + 4 * k, 4), v(VGO), sr(S_WS, 4), s(S_XO + k), mod="offen sc1")
    stamp(a, 3)
    a.s_waitcnt("vmcnt(0)")
    a.s_barrier()
    stamp(a, 4)
    a.s_cmp_lg_u32(s(S_WAVE), 0)
    a.s_cbranch_scc1("M_F1PF")
    ensure_zeroed(a, "M_Z1", VANN, VZ)
    arrive(a, "M_A1", CX, GO1, 32, v(4), VZ, VREP)
    a.s_branch("M_P2")
    a.label("M_F1PF")
    if OPT.get("pf", "1") == "1":
        srd(a, S_A, K_D, 1376 * 1024)
        a.s_lshr_b32(s(52), s(2), 3); a.s_mul_i32(s(52), s(52), 43 * 1024); a.s_lshl_b32(s(53), s(S_WAVE), 14); a.s_add_u32(s(52), s(52), s(53))
        a.s_sub_u32(s(52), s(52), 16384); a.s_add_u32(s(53), s(52), 8192)
        a.buffer_load_dword(v(4), VREP, sr(S_A, 4), s(52), mod="offen")
        a.buffer_load_dword(v(5), VREP, sr(S_A, 4), s(53), mod="offen")

def colfft(a):
    vm = VM(a)
    S_KB, S_ZB, S_WT = 54, 58, 62
    a.s_lshl_b32(s(S_KB), s(S_K), 14)
    a.s_add_u32(s(S_ZB), s(S_KB), WS_ZT)
    for i in range(1, 4): a.s_add_u32(s(S_KB + i), s(S_KB), 4096 * i)
    for i in range(1, 4): a.s_add_u32(s(S_ZB + i), s(S_ZB), 4096 * i)
    a.s_lshl_b32(s(S_WT), s(S_K), 13); a.s_lshl_b32(s(53), s(S_WAVE), 11); a.s_add_u32(s(S_WT), s(S_WT), s(53)); a.s_add_u32(s(S_WT), s(S_WT), WS_WT)
    VT16 = v(92)
    a.v_lshlrev_b32(VT16, 4, v(0))
    a.v_lshlrev_b32(v(93), 4, L)
    a.s_cmp_lg_u32(s(S_WAVE), 0)
    a.s_cbranch_scc1("M_P2GO")
    a.v_bfe_u32(v(6), L, 0, 3); a.v_lshlrev_b32(v(6), 2, v(6))
    a.s_and_b32(s(53), s(2), 7); a.s_lshl_b32(s(53), s(53), 7); a.s_add_u32(s(53), s(53), GO1)
    poll(a, "M_P2P", 53, v(6), v(7), 1, int(OPT.get("sl1", 1)))
    a.label("M_P2GO")
    a.s_barrier()
    stamp(a, 5)
    XQ = 8
    Q = [Qd(XQ + 4 * i) for i in range(4)]
    TQ = [Qd(24), Qd(28)]
    for i in range(4):
        a.buffer_load_dwordx4(Q[i].quad, VT16, sr(S_WS, 4), s(S_KB + i), mod="offen sc1"); vm.issue("x")
    WV = 64
    a.s_cmp_eq_u32(s(S_K), 256)
    a.s_cbranch_scc1("M_NOW")
    for h in range(2):
        a.buffer_load_dwordx4(vr(WV + 4 * h, 4), v(93), sr(S_WS, 4), s(S_WT), mod="offen offset:%d sc1" % (h * 1024))
    a.s_waitcnt("vmcnt(2)")
    a.s_branch("M_W2")
    a.label("M_NOW")
    a.s_waitcnt("vmcnt(0)")
    a.label("M_W2")
    tc = [C(88), C(90)]
    sh = sr(S_SQH, 2)
    def qbf(x, y, t):
        for i in range(2): bf(a, x.c[i], y.c[i], t.c[i])
        return x, t, y
    def qbfi(x, y, t, sg):
        for i in range(2): bf_i(a, x.c[i], y.c[i], t.c[i], sg)
        return x, t, y
    stamp(a, 6)
    T = list(TQ)
    t = T.pop(); t0_, t1_, fr = qbf(Q[0], Q[2], t); T.append(fr)
    t = T.pop(); t2_, t3_, fr = qbf(Q[1], Q[3], t); T.append(fr)
    Y = [None] * 4
    t = T.pop(); Y[0], Y[2], fr = qbf(t0_, t2_, t); T.append(fr)
    t = T.pop(); Y[1], Y[3], fr = qbfi(t1_, t3_, t, -1); T.append(fr)
    for b in range(4):
        if b:
            for mi in range(2): cmul(a, Y[b].c[mi], vr(TW4 + (b - 1) * 4 + mi * 2, 2), tc[mi])
        a.ds_write_b128(VT16, Y[b].quad, mod="offset:%d" % (b * 4608))
    a.s_waitcnt("lgkmcnt(0)")
    a.s_barrier()
    X = [C(8 + 2 * j) for j in range(8)]
    TT = [C(24 + 2 * j) for j in range(4)]
    for j in range(8): a.ds_read_b64(X[j].p, R2, mod="offset:%d" % (512 * j))
    a.s_waitcnt("vmcnt(0)")
    WU = 100
    sc = 2.0 ** -21
    a.s_mov_b32(s(52), flit(sc)); a.s_mov_b32(s(53), flit(sc)); a.s_mov_b32(s(62), "0xffff0000")
    for j in range(8):
        a.v_lshlrev_b32(v(WU + 2 * j), 16, v(WV + j)); a.v_and_b32(v(WU + 2 * j + 1), s(62), v(WV + j))
        a.v_pk_mul_f32(vr(WU + 2 * j, 2), vr(WU + 2 * j, 2), sr(52, 2))
    a.s_waitcnt("lgkmcnt(0)")
    out, TT = fft512(a, X, TT, TW1, TW2, W1, R1, W2, R2, sh, -1)
    for j in range(8): cmul(a, out[j], vr(WU + 2 * j, 2), tc[j & 1])
    out, TT = fft512(a, out, TT, TW1, TW2, W1, R1, W2, R2, sh, +1)
    for j in range(8): a.ds_write_b64(R2, out[j].p, mod="offset:%d" % (512 * j))
    a.s_waitcnt("lgkmcnt(0)")
    a.s_barrier()
    U = [Qd(XQ + 4 * i) for i in range(4)]
    for b in range(4): a.ds_read_b128(U[b].quad, VT16, mod="offset:%d" % (b * 4608))
    for b in range(1, 4):
        a.s_waitcnt("lgkmcnt(%d)" % (3 - b))
        for mi in range(2): cmul(a, U[b].c[mi], vr(TW4 + (b - 1) * 4 + mi * 2, 2), tc[mi], conj=True)
    T = list(TQ)
    t = T.pop(); t0_, t1_, fr = qbf(U[0], U[2], t); T.append(fr)
    t = T.pop(); t2_, t3_, fr = qbf(U[1], U[3], t); T.append(fr)
    Z = [None] * 4
    t = T.pop(); Z[0], Z[2], fr = qbf(t0_, t2_, t); T.append(fr)
    t = T.pop(); Z[1], Z[3], fr = qbfi(t1_, t3_, t, +1); T.append(fr)
    for i in range(4):
        a.buffer_store_dwordx4(Z[i].quad, VT16, sr(S_WS, 4), s(S_ZB + i), mod="offen sc1")
    stamp(a, 7)

def p3(a):
    ZI = 32768
    S_ZB, S_M0, S_SO = 54, 55, 56
    a.s_lshl_b32(s(S_ZB), s(2), 6); a.s_lshl_b32(s(53), s(S_WAVE), 18); a.s_add_u32(s(57), s(S_ZB), WS_ZT + (256 << 14))
    a.s_add_u32(s(S_ZB), s(S_ZB), s(53)); a.s_add_u32(s(S_ZB), s(S_ZB), WS_ZT)
    a.s_lshl_b32(s(S_M0), s(S_WAVE), 10); a.s_add_u32(s(S_M0), s(S_M0), ZI)
    a.s_lshl_b32(s(S_SO), s(2), 13); a.s_lshl_b32(s(53), s(S_WAVE), 11); a.s_add_u32(s(S_SO), s(S_SO), s(53)); a.s_add_u32(s(S_SO), s(S_SO), WS_S)
    VD = v(64)
    a.v_lshrrev_b32(v(4), 2, L); a.v_lshlrev_b32(VD, 14, v(4))
    a.v_lshrrev_b32(v(5), 4, L); a.v_xor_b32(v(5), v(5), L); a.v_and_b32(v(5), 3, v(5)); a.v_lshl_add_u32(VD, v(5), 4, VD)
    VZD, VZM, VP4, VP32 = v(65), v(66), v(67), v(68)
    a.v_xor_b32(v(5), s(S_WAVE), v(4)); a.v_and_b32(v(5), 3, v(5)); a.v_lshlrev_b32(v(5), 4, v(5))
    a.v_lshl_add_u32(VZD, L, 6, v(5)); a.v_add_u32(VZD, ZI, VZD)
    a.v_sub_u32(v(6), 64, L)
    a.v_lshrrev_b32(v(5), 2, v(6)); a.v_xor_b32(v(5), s(S_WAVE), v(5)); a.v_and_b32(v(5), 3, v(5)); a.v_lshlrev_b32(v(5), 4, v(5))
    a.v_lshl_add_u32(VZM, v(6), 6, v(5)); a.v_add_u32(VZM, ZI, VZM)
    a.v_lshlrev_b32(VP4, 2, L); a.v_add_u32(VP4, s(S_SCR), VP4)
    a.v_lshlrev_b32(VP32, 5, L); a.v_add_u32(VP32, s(S_SCR), VP32)
    a.s_waitcnt("vmcnt(0)")
    a.s_barrier()
    stamp(a, 8)
    a.s_cmp_lg_u32(s(S_WAVE), 0)
    a.s_cbranch_scc1("M_P3GO")
    arrive(a, "M_A2", CZ, GO2, 32, v(4), VZ, VREP)
    a.v_min_u32(v(6), 8, L); a.v_lshlrev_b32(v(6), 2, v(6))
    a.s_and_b32(s(53), s(2), 7); a.s_lshl_b32(s(53), s(53), 7); a.s_add_u32(s(53), s(53), GO2)
    poll(a, "M_P3P", 53, v(6), v(7), 1, int(OPT.get("sl2", 1)))
    a.label("M_P3GO")
    a.s_barrier()
    stamp(a, 9)
    for i in range(4):
        a.s_add_u32("m0", s(S_M0), 4096 * i)
        a.s_add_u32(s(53), s(S_ZB), (4 * i) << 18)
        a.buffer_load_dwordx4(VD, sr(S_WS, 4), s(53), mod="offen sc1 lds")
    a.s_mov_b32("m0", ZI + 16384)
    a.s_mov_b64("exec", 15)
    a.buffer_load_dwordx4(VD, sr(S_WS, 4), s(57), mod="offen sc1 lds")
    a.s_mov_b64("exec", -1)
    a.v_cmp_eq_u32("vcc", 0, L)
    a.s_mov_b32(s(58), "0x05040100"); a.s_mov_b32(s(59), "0x07060302")
    a.s_lshr_b32(s(60), s(2), 3); a.s_lshl_b32(s(60), s(60), 7); a.s_add_u32(s(60), s(60), C4)
    a.v_mov_b32(v(7), 1)
    ZQ = 100
    X = [C(8 + 2 * j) for j in range(8)]
    T = [C(24 + 2 * j) for j in range(4)]
    a.s_waitcnt("vmcnt(0)")
    a.s_barrier()
    stamp(a, 10)
    for j in range(4): a.ds_read_b128(vr(ZQ + 4 * j, 4), VZD, mod="offset:%d" % (4096 * j))
    for j in range(4, 8): a.ds_read_b128(vr(ZQ + 4 * j, 4), VZM, mod="offset:%d" % (4096 * (7 - j)))
    for j in range(8):
        a.s_waitcnt("lgkmcnt(%d)" % (7 - j))
        A_, B_ = C(ZQ + 4 * j), C(ZQ + 4 * j + 2)
        if j in (0, 4):
            a.v_cndmask_b32(A_.im, A_.im, VZ, "vcc"); a.v_cndmask_b32(B_.im, B_.im, VZ, "vcc")
        if j < 4: padd_i(a, X[j], A_, B_, +1)
        else: a.v_pk_add_f32(X[j].p, B_.p, A_.p, mod="op_sel:[1,0] op_sel_hi:[0,1] neg_hi:[0,1]")
    out, T = fft512(a, X, T, TW1, TW2, W1, R1, W2, R2, sr(S_SQH, 2), +1)
    for j in range(8):
        a.v_cvt_pk_bf16_f32(out[j].re, out[j].re, out[j].im)
        a.ds_write_b32(VP4, out[j].re, mod="offset:%d" % (256 * j))
    P = 100
    a.ds_read_b128(vr(P, 4), VP32); a.ds_read_b128(vr(P + 4, 4), VP32, mod="offset:16")
    a.s_waitcnt("lgkmcnt(0)")
    O = 108
    for row in range(2):
        for d in range(4): a.v_perm_b32(v(O + 4 * row + d), v(P + 2 * d + 1), v(P + 2 * d), s(58 + row))
        a.buffer_store_dwordx4(vr(O + 4 * row, 4), v(93), sr(S_WS, 4), s(S_SO), mod="offen offset:%d sc1" % (row * 1024))
    stamp(a, 11)
    a.s_waitcnt("vmcnt(0)")
    a.s_barrier()
    stamp(a, 12)
    a.s_cmp_lg_u32(s(S_WAVE), 0)
    a.s_cbranch_scc1("M_FEND")
    a.s_mov_b64("exec", 1)
    a.buffer_atomic_add(v(7), VZ, sr(S_WS, 4), s(60), mod="offen sc1")
    a.label("M_FEND")
    stamp_out(a)
    a.s_endpgm()

AR, ACC, BF = 32, 160, 224
S_W = 64
S_HB = 63
S_JB = 25
GVZ, GANN, VL16 = v(3), v(6), v(2)
def xf(ks, mt): return AR + (mt * 16 + ks) * 4

def g_epi_ops(a, j, pk):
    ops = []
    c0 = -2.0 * math.sqrt(2.0 / math.pi) * math.log2(math.e)
    S_C1, S_ONE2, VC0 = 58, 60, 8
    base = ACC + (j & 1) * 32
    def E(f, *args, **kw): ops.append(lambda: getattr(a, f)(*args, **kw))
    E("s_lshl_b32", s(3), s(S_JB + j), 6); E("s_add_u32", s(3), s(3), s(S_HB))
    for mt in range(2):
        O = 24 + mt * 4
        for t in range(2):
            G = base + (t * 2 + mt) * 4; U = base + ((2 + t) * 2 + mt) * 4
            T = 12 + t * 4 if not pk else 12 + t * 4
            for d in range(4): E("v_cvt_pk_bf16_f32", v(G + d), 0, v(G + d))
            if pk:
                for d in (0, 2): E("v_pk_mul_f32", vr(T + d, 2), vr(G + d, 2), vr(G + d, 2))
                for d in (0, 2): E("v_pk_fma_f32", vr(T + d, 2), vr(T + d, 2), sr(S_C1, 2), vr(VC0, 2))
                for d in (0, 2): E("v_pk_mul_f32", vr(T + d, 2), vr(T + d, 2), vr(G + d, 2))
            else:
                for d in range(4): E("v_mul_f32", v(T + d), v(G + d), v(G + d))
                for d in range(4): E("v_fma_f32", v(T + d), v(T + d), s(S_C1), v(VC0))
                for d in range(4): E("v_mul_f32", v(T + d), v(T + d), v(G + d))
            for d in range(4): E("v_exp_f32", v(T + d), v(T + d))
            for d in range(4): E("v_cvt_pk_bf16_f32", v(U + d), 0, v(U + d))
            if pk:
                for d in (0, 2): E("v_pk_add_f32", vr(T + d, 2), vr(T + d, 2), sr(S_ONE2, 2))
            else:
                for d in range(4): E("v_add_f32", v(T + d), 1.0, v(T + d))
            for d in range(4): E("v_rcp_f32", v(T + d), v(T + d))
            if pk:
                for d in (0, 2): E("v_pk_mul_f32", vr(T + d, 2), vr(T + d, 2), vr(G + d, 2))
            else:
                for d in range(4): E("v_mul_f32", v(T + d), v(T + d), v(G + d))
            for d in range(4): E("v_cvt_pk_bf16_f32", v(T + d), 0, v(T + d))
            if pk:
                for d in (0, 2): E("v_pk_mul_f32", vr(T + d, 2), vr(T + d, 2), vr(U + d, 2))
            else:
                for d in range(4): E("v_mul_f32", v(T + d), v(T + d), v(U + d))
            E("v_cvt_pk_bf16_f32", v(O + 2 * t), v(T), v(T + 1)); E("v_cvt_pk_bf16_f32", v(O + 2 * t + 1), v(T + 2), v(T + 3))
        ops.append(("st", lambda O=O, mt=mt: a.buffer_store_dwordx4(vr(O, 4), VL16, sr(S_WS, 4), s(3), mod="offen offset:%d sc1" % (mt * 1024))))
    return ops

def gemm1(a):
    vm = VM(a)
    S_XA, S_BO, S_M0, S_MT = 54, 56, 57, 62
    a.s_lshl_b32(s(S_MT), s(S_MB), 3); a.s_lshl_b32(s(53), s(S_WAVE), 1); a.s_add_u32(s(S_MT), s(S_MT), s(53))
    a.s_lshl_b32(s(S_XA), s(S_MT), 14); a.s_add_u32(s(S_XA + 1), s(S_XA), 16384)
    VXA, VBD, VT = v(4), v(5), [v(10), v(11)]
    t0, t1 = v(12), v(13)
    a.v_lshrrev_b32(t0, 3, L); a.v_and_b32(t1, 7, L)
    a.v_lshlrev_b32(VXA, 10, t0); a.v_lshl_add_u32(VXA, t1, 4, VXA)
    VXR = [VXA, v(BF), v(BF + 1), v(BF + 2)]
    for rg in range(1, 4): a.v_add_u32(VXR[rg], 8192 * rg, VXA)
    S_XQ, S_BQ = 12, 16
    a.s_add_u32(s(52), s(S_NG), s(S_MB))
    for q in range(4):
        a.s_add_u32(s(53), s(52), q); a.s_and_b32(s(53), s(53), 3 if OPT.get("rot", "1") == "1" else 0)
        if OPT.get("rot", "1") != "1": a.s_mov_b32(s(53), q)
        a.s_mul_i32(s(S_BQ + q), s(53), 128 * 2752)
        a.s_lshl_b32(s(53), s(53), 8); a.s_add_u32(s(S_XQ + q), s(53), s(S_XA))
    a.s_waitcnt("lgkmcnt(0)")
    srd(a, S_X, K_X, 2048 * 1024)
    stamp(a, 0)
    def xr(rg, p): return AR + ((rg >> 1) * 16 + 2 * p + (rg & 1)) * 4
    for p in range(8):
        for rg in range(4):
            a.buffer_load_dwordx4(vr(xr(rg, p), 4), VXR[rg], sr(S_X, 4), s(S_XQ + p // 2), mod="offen offset:%d" % (128 * (p & 1))); vm.issue("x%d_%d" % (rg, p))
    stamp(a, 1)
    VTW, VTR = v(14), v(15)
    a.s_lshl_b32(s(52), s(S_WAVE), 12); a.s_add_u32(s(52), s(52), 65536)
    a.v_lshrrev_b32(VTW, 4, L); a.v_xor_b32(VTW, VTW, t1); a.v_lshlrev_b32(VTW, 4, VTW); a.v_lshl_add_u32(VTW, t0, 7, VTW); a.v_add_u32(VTW, s(52), VTW)
    a.v_xor_b32(v(7), 64, VTW)
    a.v_and_b32(t0, 15, L); a.v_lshrrev_b32(t1, 4, L)
    a.v_lshrrev_b32(VTR, 1, t0); a.v_xor_b32(VTR, VTR, t1); a.v_lshlrev_b32(VTR, 4, VTR); a.v_lshl_add_u32(VTR, t0, 7, VTR); a.v_add_u32(VTR, s(52), VTR)
    a.v_xor_b32(v(28), 64, VTR)
    a.v_bfe_u32(t0, L, 2, 2); a.v_lshl_add_u32(t0, t1, 3, t0); a.v_mul_u32_u24(VBD, 2752, t0)
    a.v_and_b32(t1, 1, t1); a.v_lshlrev_b32(t0, 1, t1); a.v_xor_b32(t0, t0, L); a.v_and_b32(t0, 3, t0); a.v_lshl_add_u32(VBD, t0, 4, VBD)
    a.s_cmp_lt_u32(s(S_WAVE), 2)
    a.s_cselect_b32(s(S_W), s(K_G), s(K_U)); a.s_cselect_b32(s(S_W + 1), s(K_G + 1), s(K_U + 1))
    a.s_mov_b32(s(S_W + 2), "0x%x" % (512 * 2752)); a.s_mov_b32(s(S_W + 3), "0x00020000")
    a.s_and_b32(s(53), s(S_WAVE), 1); a.s_mul_i32(s(S_BO), s(53), 64 * 2752); a.s_mul_i32(s(52), s(S_NG), 192); a.s_add_u32(s(S_BO), s(S_BO), s(52))
    for q in range(4): a.s_add_u32(s(S_BQ + q), s(S_BQ + q), s(S_BO))
    a.s_mul_i32(s(52), s(S_MB), 43691); a.s_lshr_b32(s(52), s(52), 17); a.s_mul_i32(s(52), s(52), 3); a.s_sub_u32(s(52), s(S_MB), s(52))
    if OPT.get("jrot", "1") != "1": a.s_mov_b32(s(52), 0)
    a.s_lshl_b32(s(S_JB), s(52), 6)
    for j in (1, 2):
        a.s_add_u32(s(S_JB + j), s(S_JB + j - 1), 64); a.s_cmp_eq_u32(s(S_JB + j), 192); a.s_cselect_b32(s(S_JB + j), 0, s(S_JB + j))
    a.s_cmp_eq_u32(s(S_NG), 14)
    for j in range(3): a.s_cselect_b32(s(S_JB + j), 0, s(S_JB + j))
    a.s_lshl_b32(s(S_M0), s(S_WAVE), 12)
    def loadB(st):
        j, q = st // 4, st % 4
        a.s_add_u32(s(28), s(S_BQ + q), s(S_JB + j))
        for kk in range(2):
            for h in range(2):
                a.s_add_u32("m0", s(S_M0), (st % 4) * 16384 + kk * 2048 + h * 1024)
                a.s_add_u32(s(52), s(28), 2752 * (32 * kk + 4 * h))
                a.buffer_load_dwordx4(VBD, sr(S_W, 4), s(52), mod="offen lds"); vm.issue("b%d" % st)
    if OPT.get("bl", "0") == "0":
        for st in range(4): loadB(st)
    srd(a, S_WS, K_WS, WS_BYTES); srd(a, S_DBG, K_DBG, 256)
    a.v_lshrrev_b32(t0, 2, L); a.v_lshlrev_b32(t0, 6, t0); a.v_and_b32(VT[0], 3, L); a.v_lshl_add_u32(t0, VT[0], 3, t0)
    a.v_lshl_add_u32(VT[0], t1, 5, t0); a.v_xor_b32(VT[1], 32, VT[0])
    a.s_mov_b32(s(53), "0xffff0000"); a.s_mov_b32(s(60), "0x3f803f80")
    def SU(rg): return ACC + rg * 4
    for i in range(16): a.v_mov_b32(v(ACC + i), 0)
    def stats(rg, p):
        vm.wait("x%d_%d" % (rg, p))
        x = xr(rg, p); b = SU(rg)
        for d in range(4):
            a.v_dot2c_f32_bf16(v(b + (d & 1)), s(60), v(x + d))
            a.v_dot2c_f32_bf16(v(b + 2 + (d & 1)), v(x + d), v(x + d))
    NM, RS = [C(16 + 4 * i) for i in range(2)], [C(18 + 4 * i) for i in range(2)]
    def fin(rg):
        b = SU(rg); i = rg & 1
        sm, q = v(b), v(b + 2)
        a.v_add_f32(sm, sm, v(b + 1)); a.v_add_f32(q, q, v(b + 3))
        for md in ("quad_perm:[1,0,3,2]", "quad_perm:[2,3,0,1]", "row_half_mirror"):
            a.v_add_f32_dpp(sm, sm, sm, mod=md + " row_mask:0xf bank_mask:0xf")
            a.v_add_f32_dpp(q, q, q, mod=md + " row_mask:0xf bank_mask:0xf")
        a.v_mul_f32(sm, flit(1 / 512.), sm); a.v_mul_f32(q, flit(1 / 512.), q)
        a.v_fma_f32(q, "-" + sm, sm, q)
        a.v_cvt_pk_bf16_f32(NM[i].re, 0, "-" + sm)
        a.v_cvt_pk_bf16_f32(q, 0, q)
        a.v_mov_b32(NM[i].im, NM[i].re)
        a.v_add_f32(q, flit(1e-5), q)
        a.v_cvt_pk_bf16_f32(q, 0, q)
        a.v_sqrt_f32(q, q)
        a.v_cvt_pk_bf16_f32(q, 0, q)
        a.v_rcp_f32(RS[i].re, q)
        a.v_mov_b32(RS[i].im, RS[i].re)
    def norm(rg, p):
        i = rg & 1
        T = BF + i * 8; O = BF + 16 + ((2 * p + i) & 3) * 4
        x = xr(rg, p)
        for d in range(4): a.v_lshlrev_b32(v(T + 2 * d), 16, v(x + d)); a.v_and_b32(v(T + 2 * d + 1), s(53), v(x + d))
        for d in range(4): a.v_pk_add_f32(vr(T + 2 * d, 2), vr(T + 2 * d, 2), NM[i].p)
        for d in range(8): a.v_cvt_pk_bf16_f32(v(T + d), 0, v(T + d))
        for d in range(4): a.v_pk_mul_f32(vr(T + 2 * d, 2), vr(T + 2 * d, 2), RS[i].p)
        for d in range(4): a.v_cvt_pk_bf16_f32(v(O + d), v(T + 2 * d), v(T + 2 * d + 1))
        a.ds_write_b128(v(7) if i else VTW, vr(O, 4), mod="offset:%d" % ((p & 1) * 2048 + i * 1024))
        if i:
            for e in range(2): a.ds_read_b128(vr(xf(2 * p + e, rg >> 1), 4), v(28) if e else VTR, mod="offset:%d" % ((p & 1) * 2048))
    stamp(a, 2)
    for p in range(8):
        for rg in range(4): stats(rg, p)
    stamp(a, 3)
    if OPT.get("bl", "0") == "1":
        for st in range(4): loadB(st)
    fin(0); fin(1)
    for p in range(8): norm(0, p); norm(1, p)
    fin(2); fin(3)
    a.buffer_load_dword(GANN, GVZ, sr(S_DBG, 4), 0, mod="offen sc1"); vm.issue("ann")
    for p in range(8): norm(2, p); norm(3, p)
    stamp(a, 4)
    c0 = -2.0 * math.sqrt(2.0 / math.pi) * math.log2(math.e)
    c1 = c0 * 0.044715
    a.s_mov_b32(s(58), flit(c1)); a.s_mov_b32(s(59), flit(c1)); a.s_mov_b32(s(60), flit(1.0)); a.s_mov_b32(s(61), flit(1.0))
    a.v_mov_b32(v(8), flit(c0)); a.v_mov_b32(v(9), flit(c0))
    a.s_mul_i32(s(52), s(S_NG), 3)
    a.s_lshr_b32(s(S_HB), s(S_MT), 2); a.s_mul_i32(s(S_HB), s(S_HB), 43); a.s_add_u32(s(S_HB), s(S_HB), s(52)); a.s_lshl_b32(s(S_HB), s(S_HB), 12)
    a.s_and_b32(s(52), s(S_MT), 3); a.s_lshl_b32(s(52), s(52), 10); a.s_add_u32(s(S_HB), s(S_HB), s(52)); a.s_add_u32(s(S_HB), s(S_HB), WS_H)
    def rd(t, f):
        st = t // 4; kk = t % 4
        mat, tt = f >> 1, f & 1
        for hh in range(2):
            a.ds_read_b64_tr_b16(vr(BF + (t & 1) * 16 + f * 4 + 2 * hh, 2), VT[tt], mod="offset:%d" % ((st % 4) * 16384 + mat * 8192 + kk * 2048 + hh * 1024))
    def mf(t, f, mt):
        j, ks = t // 16, t % 16
        ac = vr(ACC + (j & 1) * 32 + (f * 2 + mt) * 4, 4)
        a.v_mfma_f32_16x16x32_bf16(ac, vr(BF + (t & 1) * 16 + f * 4, 4), vr(xf(ks, mt), 4), ac if ks else 0)
    fill = []
    def pop(n):
        for _ in range(n):
            if not fill: return
            o = fill.pop(0)
            if isinstance(o, tuple): o[1](); vm.issue("h")
            else: o()
    a.s_waitcnt("vmcnt(%d) lgkmcnt(0)" % vm.count("b0"))
    a.s_barrier()
    stamp(a, 5)
    a.s_setprio(int(OPT.get("gp", 1)))
    for f in range(4): rd(0, f)
    for t in range(48):
        st = t // 4
        new = (t + 1) % 4 == 0 and t < 47
        if t == 16:
            stamp(a, 6)
        if t == 32: stamp(a, 7)
        if t % 16 == 1 and t > 16: fill += g_epi_ops(a, t // 16 - 1, False)
        if new:
            a.s_waitcnt("vmcnt(%d) lgkmcnt(0)" % vm.count("b%d" % (st + 1)))
            a.s_barrier()
        for f in range(4):
            if not new: a.s_waitcnt("lgkmcnt(%d)" % (6 if t < 47 else 6 - 2 * f))
            mf(t, f, 0)
            if t < 47: rd(t + 1, f)
            mf(t, f, 1)
            if new and f == 0 and st + 4 < 12: loadB(st + 4)
            pop(4)
        if t % 16 == 15: assert not fill
        if t == 15:
            a.s_cmp_eq_u32(s(S_NG), 14)
            a.s_cbranch_scc1("M_GT")
    a.label("M_GT")
    a.s_setprio(0)
    stamp(a, 8)
    a.s_waitcnt("vmcnt(0) lgkmcnt(0)")
    a.s_barrier()
    g2_pre(a)
    for o in g_epi_ops(a, 2, True): (o[1] if isinstance(o, tuple) else o)()
    stamp(a, 9)
    g2_mid(a, True)
    a.s_branch("M_G2")

S_WD, S_O = S_A, S_B
S_MB6, S_NB, S_HO, S_WO, S_M2 = 54, 55, 56, 57, 62
VWD, VT2, VRD = v(4), [v(5), v(7)], v(10)
WRG = 32
def g2_dma(a, i):
    for q in range(4):
        a.s_add_u32("m0", s(S_M2), (i % 5) * 4096 + q * 1024)
        a.s_add_u32(s(52), s(S_WO), i * 131072 + q * 8192)
        a.buffer_load_dwordx4(VWD, sr(S_WD, 4), s(52), mod="offen lds")
def g2_trr(a, i, blk):
    for nt in range(4):
        for h in range(2):
            a.ds_read_b64_tr_b16(vr(blk + nt * 4 + 2 * h, 2), VT2[nt >> 1], mod="offset:%d" % ((i % 5) * 4096 + h * 2048 + (nt & 1) * 8))
def g2_pre(a):
    a.s_and_b32(s(S_MB6), s(2), 7); a.s_lshl_b32(s(S_MB6), s(S_MB6), 2); a.s_bfe_u32(s(52), s(2), "0x20003"); a.s_add_u32(s(S_MB6), s(S_MB6), s(52))
    a.s_bfe_u32(s(S_NB), s(2), "0x30005")
    a.s_lshl_b32(s(S_WO), s(S_WAVE), 15); a.s_lshl_b32(s(52), s(S_NB), 7); a.s_add_u32(s(S_WO), s(S_WO), s(52))
    a.s_mul_i32(s(S_M2), s(S_WAVE), 20480)
    t0, t1 = v(12), v(13)
    a.v_lshrrev_b32(t0, 3, L); a.v_lshlrev_b32(VWD, 10, t0)
    a.v_lshrrev_b32(t1, 4, L); a.v_and_b32(t1, 1, t1); a.v_xor_b32(t1, t1, L); a.v_and_b32(t1, 7, t1)
    a.v_lshl_add_u32(VWD, t1, 4, VWD)
    srd(a, S_WD, K_D, 1376 * 1024)
    for i in range(5): g2_dma(a, i)
    a.v_lshlrev_b32(VT2[0], 5, L); a.v_add_u32(VT2[0], s(S_M2), VT2[0])
    a.v_and_b32(t0, 1, t0); a.v_lshlrev_b32(t0, 4, t0); a.v_xor_b32(t1, 16, t0)
    a.v_add_u32(VT2[1], VT2[0], t1); a.v_add_u32(VT2[0], VT2[0], t0)
    a.s_mul_i32(s(S_HO), s(S_MB6), 43); a.s_add_u32(s(S_HO), s(S_HO), s(S_WAVE)); a.s_lshl_b32(s(S_HO), s(S_HO), 12); a.s_add_u32(s(S_HO), s(S_HO), WS_H)
def g2_mid(a, hs):
    n = 2 if hs else 0
    for i in range(5):
        a.s_waitcnt("vmcnt(%d)" % (16 + n))
        g2_trr(a, i, WRG + 16 * i)
        a.s_waitcnt("lgkmcnt(0)")
        g2_dma(a, i + 5)
    if hs:
        a.s_waitcnt("vmcnt(20)")
        a.s_barrier()
        stamp(a, 10)
        a.s_cmp_lg_u32(s(S_WAVE), 0)
        a.s_cbranch_scc1("M_G2")
        ensure_zeroed(a, "M_Z2", GANN, GVZ)
        a.s_lshl_b32(s(52), s(S_MB), 7); a.s_add_u32(s(52), s(52), C3)
        a.v_mov_b32(v(12), 1)
        a.s_mov_b64("exec", 1)
        a.buffer_atomic_add(v(12), GVZ, sr(S_WS, 4), s(52), mod="offen sc1")
        a.s_mov_b64("exec", -1)

def gemm2(a):
    a.label("M_G2")
    a.s_waitcnt("vmcnt(16)")
    g2_trr(a, 5, WRG + 80)
    a.s_waitcnt("lgkmcnt(0)")
    g2_dma(a, 10)
    srd(a, S_X, K_X, 2048 * 1024); srd(a, S_O, K_O, 2048 * 1024)
    S_RO, S_SI, S_FI = 58, 59, 60
    a.s_lshl_b32(s(S_RO), s(S_MB6), 6); a.s_lshl_b32(s(52), s(S_WAVE), 4); a.s_add_u32(s(S_RO), s(S_RO), s(52))
    a.s_lshl_b32(s(S_RO), s(S_RO), 10); a.s_lshl_b32(s(52), s(S_NB), 7); a.s_add_u32(s(S_RO), s(S_RO), s(52))
    a.s_add_u32(s(S_SI), s(S_RO), WS_S)
    a.s_lshl_b32(s(S_FI), s(S_MB6), 7); a.s_add_u32(s(S_FI), s(S_FI), C4)
    VO, VPW = v(11), v(12)
    a.v_and_b32(v(13), 15, L); a.v_lshrrev_b32(v(14), 4, L)
    a.v_lshlrev_b32(VO, 10, v(13)); a.v_lshl_add_u32(VO, v(14), 5, VO)
    a.s_lshl_b32(s(52), s(S_WAVE), 12); a.v_add_u32(VRD, s(52), VL16)
    a.v_add_u32(VPW, s(S_M2), VL16)
    a.s_cmp_lg_u32(s(S_WAVE), 0)
    a.s_cbranch_scc1("M_G2GO")
    a.s_lshr_b32(s(53), s(S_MB6), 1); a.s_lshl_b32(s(53), s(53), 7); a.s_add_u32(s(53), s(53), C3)
    poll(a, "M_G2P", 53, GVZ, v(13), 15, int(OPT.get("sl3", 1)))
    a.label("M_G2GO")
    a.s_barrier()
    stamp(a, 11)
    vm = VM(a, ["w"] * 20)
    AC2 = 192
    def acc(nt, mt): return vr(AC2 + (nt * 4 + mt) * 4, 4)
    free = [128, 144, 160, 176, 16]
    hb = {}; wb = {i: WRG + 16 * i for i in range(6)}
    nxt = [0]
    def issueH():
        i = nxt[0]; nxt[0] += 1
        hb[i] = free.pop(0)
        for q in range(4):
            a.buffer_load_dwordx4(vr(hb[i] + 4 * q, 4), VL16, sr(S_WS, 4), s(S_HO), mod="offen offset:%d sc1" % (q * 1024)); vm.issue("h%d" % i)
        a.s_add_u32(s(S_HO), s(S_HO), 16384)
    for i in range(5): issueH()
    nw = 6
    XR = None
    for i in range(11):
        vm.wait("h%d" % i)
        if i == 0: stamp(a, 12)
        if i >= 6: a.s_waitcnt("lgkmcnt(%d)" % (8 * (nw - 1 - i)))
        if i == 10:
            a.s_cmp_eq_u32(s(S_WAVE), 3)
            a.s_cbranch_scc1("M_G2E")
        for nt in range(4):
            for mt in range(4):
                a.v_mfma_f32_16x16x32_bf16(acc(nt, mt), vr(wb[i] + 4 * nt, 4), vr(hb[i] + 4 * mt, 4), acc(nt, mt) if i else 0)
        free += [hb[i], wb[i]]
        while free and nxt[0] < 11: issueH()
        if free and XR is None:
            XR = free.pop(0)
            for d in range(2):
                a.buffer_load_dwordx4(vr(XR + 4 * d, 4), VO, sr(S_X, 4), s(S_RO), mod="offen offset:%d" % (16 * d)); vm.issue("x")
        while free and nw < 11 and nw <= i + 2:
            wb[nw] = free.pop(0); g2_trr(a, nw, wb[nw]); nw += 1
    a.label("M_G2E")
    a.s_nop(7)
    stamp(a, 13)
    for mt in range(4):
        for nt in range(4):
            a.ds_write_b128(VPW, acc(nt, mt), mod="offset:%d" % ((mt * 4 + nt) * 1024))
    poll(a, "M_G2S", S_FI, GVZ, v(13), 8, int(OPT.get("sl4", 1)))
    stamp(a, 14)
    SR = XR + 8
    for d in range(2):
        a.buffer_load_dwordx4(vr(SR + 4 * d, 4), VO, sr(S_WS, 4), s(S_SI), mod="offen offset:%d sc1" % (16 * d))
    nl2e = -math.log2(math.e)
    a.s_mov_b32(s(52), flit(nl2e)); a.s_mov_b32(s(53), flit(nl2e)); a.s_mov_b32(s(54), flit(1.0)); a.s_mov_b32(s(55), flit(1.0))
    a.s_mov_b32(s(56), "0xffff0000")
    a.s_waitcnt("lgkmcnt(0)")
    a.s_barrier()
    R = AC2
    for nt in range(4):
        for src in range(4):
            a.ds_read_b128(vr(R + (nt * 4 + src) * 4, 4), VRD, mod="offset:%d" % (src * 20480 + nt * 1024))
    rest = [b for b in (32, 48, 64, 80, 96, 112) if b != XR]
    SU, XU, OUT = rest[0], rest[1], rest[2]
    for d in range(8):
        a.v_lshlrev_b32(v(XU + 2 * d), 16, v(XR + d)); a.v_and_b32(v(XU + 2 * d + 1), s(56), v(XR + d))
    for nt in range(4):
        a.s_waitcnt("lgkmcnt(%d)" % (12 - 4 * nt))
        b = R + nt * 16
        for d in (0, 2):
            a.v_pk_add_f32(vr(b + d, 2), vr(b + d, 2), vr(b + 4 + d, 2))
            a.v_pk_add_f32(vr(b + 8 + d, 2), vr(b + 8 + d, 2), vr(b + 12 + d, 2))
        for d in (0, 2): a.v_pk_add_f32(vr(b + d, 2), vr(b + d, 2), vr(b + 8 + d, 2))
        for d in range(4): a.v_cvt_pk_bf16_f32(v(b + d), 0, v(b + d))
        for d in (0, 2): a.v_pk_mul_f32(vr(b + 4 + d, 2), vr(b + d, 2), sr(52, 2))
        for d in range(4): a.v_exp_f32(v(b + 4 + d), v(b + 4 + d))
        for d in (0, 2): a.v_pk_add_f32(vr(b + 4 + d, 2), vr(b + 4 + d, 2), sr(54, 2))
        for d in range(4): a.v_rcp_f32(v(b + 4 + d), v(b + 4 + d))
        for d in (0, 2): a.v_pk_mul_f32(vr(b + d, 2), vr(b + d, 2), vr(b + 4 + d, 2))
        for d in range(4): a.v_cvt_pk_bf16_f32(v(b + d), 0, v(b + d))
    a.s_waitcnt("vmcnt(0)")
    for d in range(8):
        a.v_lshlrev_b32(v(SU + 2 * d), 16, v(SR + d)); a.v_and_b32(v(SU + 2 * d + 1), s(56), v(SR + d))
    for nt in range(4):
        b = R + nt * 16
        for d in (0, 2): a.v_pk_mul_f32(vr(b + d, 2), vr(b + d, 2), vr(SU + 4 * nt + d, 2))
        for d in range(4): a.v_cvt_pk_bf16_f32(v(b + d), 0, v(b + d))
        for d in (0, 2): a.v_pk_add_f32(vr(b + d, 2), vr(b + d, 2), vr(XU + 4 * nt + d, 2))
        a.v_cvt_pk_bf16_f32(v(OUT + 2 * nt), v(b), v(b + 1)); a.v_cvt_pk_bf16_f32(v(OUT + 2 * nt + 1), v(b + 2), v(b + 3))
        if nt & 1:
            a.buffer_store_dwordx4(vr(OUT + 2 * nt - 2, 4), VO, sr(S_O, 4), s(S_RO), mod="offen offset:%d" % (16 * (nt >> 1)))
    stamp(a, 15)
    stamp_out(a)
    a.s_endpgm()

def mk(a):
    a.label("m_kernel")
    a.s_cmp_ge_u32(s(2), M_GRID)
    a.s_cbranch_scc1("M_END")
    a.s_load_dwordx16(sr(32, 16), sr(0, 2), 0)
    a.s_load_dwordx4(sr(48, 4), sr(0, 2), 64)
    a.v_and_b32(L, 63, v(0))
    a.v_lshrrev_b32(v(2), 6, v(0))
    a.v_readfirstlane_b32(s(S_WAVE), v(2))
    a.s_mov_b32(s(S_SQH), flit(SQH)); a.s_mov_b32(s(S_SQH + 1), flit(SQH))
    if common.STAMPS:
        for i in range(NSTAMP): a.s_mov_b32(s(68 + i), 0)
    a.s_cmp_ge_u32(s(2), 256)
    a.s_cbranch_scc1("M_G")
    a.s_setprio(int(OPT.get("fp", 3)))
    if OPT.get("fsl"):
        for i in range(int(OPT["fsl"])): a.s_sleep(127)
    a.s_mov_b32(s(S_K), s(2))
    p1(a)
    a.label("M_P2")
    colfft(a)
    a.s_cmp_eq_u32(s(S_K), 256)
    a.s_cbranch_scc1("M_K256B")
    p3(a)
    a.label("M_G")
    a.v_lshlrev_b32(VL16, 4, L)
    a.v_mov_b32(GVZ, 0)
    a.s_and_b32(s(S_MB), s(2), 1); a.s_lshl_b32(s(S_MB), s(S_MB), 3); a.s_bfe_u32(s(52), s(2), "0x30003"); a.s_add_u32(s(S_MB), s(S_MB), s(52))
    a.s_bfe_u32(s(S_NG), s(2), "0x20001"); a.s_lshl_b32(s(S_NG), s(S_NG), 2); a.s_bfe_u32(s(52), s(2), "0x20006"); a.s_xor_b32(s(52), s(52), 3); a.s_add_u32(s(S_NG), s(S_NG), s(52))
    a.s_cmp_eq_u32(s(S_NG), 15)
    a.s_cbranch_scc1("M_SPARE")
    gemm1(a)
    a.label("M_SPARE")
    a.s_waitcnt("lgkmcnt(0)")
    srd(a, S_WS, K_WS, WS_BYTES); srd(a, S_DBG, K_DBG, 256)
    stamp(a, 0)
    a.s_cmp_eq_u32(s(S_MB), 1)
    a.s_cbranch_scc1("M_K256")
    a.v_mov_b32(GANN, 0)
    a.s_or_b32(s(52), s(S_MB), s(S_WAVE))
    a.s_cmp_lg_u32(s(52), 0)
    a.s_cbranch_scc1("M_SP2")
    for i in range(4): a.v_mov_b32(v(8 + i), 0)
    a.v_mov_b32(GANN, 1)
    a.s_mov_b32(s(52), SY); a.s_mov_b32(s(53), SY + 4096); a.s_mov_b32(s(54), SY + 8192)
    for o in range(0, SYEND - SY, 1024):
        a.buffer_store_dwordx4(vr(8, 4), VL16, sr(S_WS, 4), s(52 + o // 4096), mod="offen offset:%d sc1" % (o % 4096))
    a.s_waitcnt("vmcnt(0)")
    a.s_mov_b64("exec", 1)
    a.buffer_store_dword(GANN, GVZ, sr(S_DBG, 4), 0, mod="offen sc1")
    a.s_mov_b64("exec", -1)
    a.s_waitcnt("vmcnt(0)")
    stamp(a, 1)
    a.label("M_SP2")
    a.s_sleep(int(OPT.get("spsl", 100)))
    g2_pre(a)
    g2_mid(a, False)
    a.s_cmp_lg_u32(s(S_WAVE), 0)
    a.s_cbranch_scc1("M_G2")
    ensure_zeroed(a, "M_Z3", GANN, GVZ)
    gemm2(a)
    a.label("M_K256")
    a.s_setprio(int(OPT.get("fp", 3)))
    a.s_mov_b32(s(S_K), 256)
    srd(a, S_A, K_WR, 2048 * 514); srd(a, S_B, K_WI, 2048 * 514)
    a.v_lshlrev_b32(v(4), 2, L); a.v_add_u32(v(4), s(S_WAVE), v(4)); a.v_mul_u32_u24(v(4), 514, v(4))
    for j in range(8):
        a.s_mov_b32(s(52), j * 256 * 514)
        a.buffer_load_ushort(v(64 + j), v(4), sr(S_A, 4), s(52), mod="offen offset:512")
        a.buffer_load_ushort(v(72 + j), v(4), sr(S_B, 4), s(52), mod="offen offset:512")
    f_setup(a)
    p2_setup(a)
    a.v_mov_b32(VANN, 0)
    a.v_lshlrev_b32(VREP, 7, L)
    a.s_waitcnt("vmcnt(0)")
    for j in range(8): a.v_lshl_or_b32(v(64 + j), v(72 + j), 16, v(64 + j))
    a.s_cmp_lg_u32(s(S_WAVE), 0)
    a.s_cbranch_scc1("M_P2")
    ensure_zeroed(a, "M_Z4", VANN, VZ)
    a.s_branch("M_P2")
    a.label("M_K256B")
    a.s_waitcnt("vmcnt(0)")
    a.s_barrier()
    a.s_setprio(0)
    a.v_lshlrev_b32(VL16, 4, L)
    a.v_mov_b32(GANN, 1)
    a.s_cmp_lg_u32(s(S_WAVE), 0)
    a.s_cbranch_scc1("M_K256C")
    a.s_mov_b32(s(52), GO2 + 32)
    a.s_mov_b64("exec", 255)
    a.buffer_store_dword(GANN, VREP, sr(S_WS, 4), s(52), mod="offen sc1")
    a.s_mov_b64("exec", -1)
    a.s_waitcnt("vmcnt(0)")
    a.label("M_K256C")
    g2_pre(a)
    g2_mid(a, False)
    a.s_branch("M_G2")
    a.label("M_END")
    a.s_endpgm()
```

```python
import sys
from dsl import *
import common
from gen import build
if __name__ == "__main__":
    dst = sys.argv[1] if len(sys.argv) > 1 else "test.s"
    for o in sys.argv[2:]:
        k, val = o.split("=")
        if k == "stamps": common.STAMPS = True
        common.OPT[k] = val.replace("+", " ")
    import m as M
    ks = [("m_kernel", M.mk, M.M_GRID, 256, M.M_LDS, M.M_VGPR)]
    open(dst, "w").write(build(ks).replace("(3 launches)", "(one persistent launch)"))
    import runner
    runner.build(dst)
    print("assembled", dst, file=sys.stderr)
```
